```python
import torch

def _softmax(x, axis=-1):
    return torch.softmax(x, dim=axis)

def _gelu(x):
    return torch.nn.functional.gelu(x, approximate='tanh')

def _silu(x):
    return torch.nn.functional.silu(x)

def _sigmoid(x):
    return torch.sigmoid(x)

def _layernorm(x, axis=-1, eps=1e-05):
    m = x.mean(dim=axis, keepdim=True)
    v = x.var(dim=axis, keepdim=True, unbiased=False)
    return (x - m) / torch.sqrt(v + eps)

def _scatter_add(tgt, idx, src, axis=0):
    return tgt.clone().index_add_(axis, idx, src)

def _segment_sum(src, seg, n):
    out = torch.zeros((n,) + src.shape[1:], dtype=src.dtype)
    return out.index_add_(0, seg, src)

def _pad(x, pw):
    flat = tuple((v for pair in reversed(pw) for v in pair))
    return torch.nn.functional.pad(x, flat)
kernel_name = 'gated_mix__ssm_conv_s4__memory_aug_recurrent_mem_tr__prompt'

def setup_inputs():

    _w = lambda a: (lambda t: t.to(torch.bfloat16) if t.is_floating_point() else t)(torch.as_tensor(a))

    def _A_setup():
        B, L, D, N = (1, 2048, 576, 128)
        A_re = -(lambda _x: torch.exp(torch.as_tensor(_x)))((lambda *s: torch.randn(*s, dtype=torch.bfloat16) * 6.4)(D, N))
        A_im = torch.pi * (lambda *s: torch.randn(*s, dtype=torch.bfloat16) * 0.05)(D, N)
        B_re = (lambda *s: torch.randn(*s, dtype=torch.bfloat16) * 0.1)(D, N)
        B_im = (lambda *s: torch.randn(*s, dtype=torch.bfloat16) * 0.1)(D, N)
        C_re = (lambda *s: torch.randn(*s, dtype=torch.bfloat16) * 0.1)(D, N)
        C_im = (lambda *s: torch.randn(*s, dtype=torch.bfloat16) * 0.1)(D, N)
        log_dt = (lambda *s: torch.randn(*s, dtype=torch.bfloat16) * 0.05)(D) * 0.5 - 4.0
        Dskip = (lambda *s: torch.randn(*s, dtype=torch.bfloat16) * 0.05)(D)
        return {'u': _w((lambda *s: torch.randn(*s, dtype=torch.bfloat16) * 0.05)(B, L, D)), 'A_re': _w(A_re), 'A_im': _w(A_im), 'B_re': _w(B_re), 'B_im': _w(B_im), 'C_re': _w(C_re), 'C_im': _w(C_im), 'log_dt': _w(log_dt), 'Dskip': _w(Dskip)}
    _A_in = _A_setup()

    def _B_setup():
        B, S, Dm = (1, 2048, 576)
        H, Dh = (32, 128)
        M, seg = (8, 32)
        seg = min(seg, S)
        S = S // seg * seg
        return {'x': _w((lambda *s: torch.randn(*s, dtype=torch.bfloat16) * 0.05)(B, S, Dm)), 'mem0': _w((lambda *s: torch.randn(*s, dtype=torch.bfloat16) * 0.4)(B, M, Dm)), 'Wq': _w((lambda *s: torch.randn(*s, dtype=torch.bfloat16) * 6.4)(Dm, H, Dh) * Dm ** (-0.5)), 'Wk': _w((lambda *s: torch.randn(*s, dtype=torch.bfloat16) * 6.4)(Dm, H, Dh) * Dm ** (-0.5)), 'Wv': _w((lambda *s: torch.randn(*s, dtype=torch.bfloat16) * 0.4)(Dm, H, Dh) * Dm ** (-0.5)), 'Wo': _w((lambda *s: torch.randn(*s, dtype=torch.bfloat16) * 0.4)(H, Dh, Dm) * (H * Dh) ** (-0.5)), 'seg_len': seg}
    _B_in = _B_setup()
    return {'A_u': _A_in['u'], 'A_A_re': _A_in['A_re'], 'A_A_im': _A_in['A_im'], 'A_B_re': _A_in['B_re'], 'A_B_im': _A_in['B_im'], 'A_C_re': _A_in['C_re'], 'A_C_im': _A_in['C_im'], 'A_log_dt': _A_in['log_dt'], 'A_Dskip': _A_in['Dskip'], 'B_x': _B_in['x'], 'B_mem0': _B_in['mem0'], 'B_Wq': _B_in['Wq'], 'B_Wk': _B_in['Wk'], 'B_Wv': _B_in['Wv'], 'B_Wo': _B_in['Wo'], 'B_seg_len': _B_in['seg_len'], 'gate_w': _w((lambda *s: torch.randn(*s, dtype=torch.bfloat16) * 0.05)(576) * 16.0)}

def reference(A_u, A_A_re, A_A_im, A_B_re, A_B_im, A_C_re, A_C_im, A_log_dt, A_Dskip, B_x, B_mem0, B_Wq, B_Wk, B_Wv, B_Wo, B_seg_len, gate_w):

    def _A_ref(u, A_re, A_im, B_re, B_im, C_re, C_im, log_dt, Dskip):
        Bsz, L, D = u.shape
        dt = torch.exp(log_dt)[:, None]
        A = A_re + 1j * A_im
        Bc = B_re + 1j * B_im
        Cc = C_re + 1j * C_im
        logdA = dt * A
        dB = dt * Bc
        l = (lambda x, dt: x.to(dt))(torch.arange(L), A_re.dtype)
        P = torch.exp(logdA[:, :, None] * l[None, None, :])
        K = torch.einsum('dn,dnl,dn->dl', Cc, P, dB).real
        L2 = 2 * L
        Kp = _pad(K, ((0, 0), (0, L)))
        up = (lambda x, *d: x.permute(*d))(u, 0, 2, 1)
        up = _pad(up, ((0, 0), (0, 0), (0, L)))
        Kf = (lambda x, axes=(-2, -1): torch.fft.rfft2(x.float(), dim=axes))(Kp[:, None, :], axes=(-2, -1))
        Uf = (lambda x, axes=(-2, -1): torch.fft.rfft2(x.float(), dim=axes))(up[:, :, None, :], axes=(-2, -1))
        Yf = Uf * Kf[None, :, :, :]
        y = (lambda x, s, axes=(-2, -1): torch.fft.irfft2(x, s=s, dim=axes).to(torch.bfloat16))(Yf, (1, L2), axes=(-2, -1))[:, :, 0, :L]
        y = (lambda x, *d: x.permute(*d))(y, 0, 2, 1) + u * Dskip[None, None, :]
        return y

    def _B_ref(x, mem0, Wq, Wk, Wv, Wo, seg_len):
        B, S, Dm = x.shape
        H, Dh = (Wq.shape[1], Wq.shape[2])
        M = mem0.shape[1]
        scale = Dh ** (-0.5)
        n_seg = S // seg_len
        L = M + seg_len
        idx = torch.arange(L)
        mask = (idx[:, None] < M) | (idx[:, None] >= idx[None, :])
        mem = mem0
        outs = []
        for s in range(n_seg):
            xs = x[:, s * seg_len:(s + 1) * seg_len, :].clone()
            h = torch.concatenate([mem, xs], axis=1)
            q = torch.einsum('btd,dhe->bhte', h, Wq)
            k = torch.einsum('btd,dhe->bhte', h, Wk)
            v = torch.einsum('btd,dhe->bhte', h, Wv)
            scores = torch.einsum('bhqe,bhke->bhqk', q, k) * scale
            scores = torch.where(mask[None, None], scores, -1000000000.0)
            p = _softmax(scores, axis=-1)
            o = torch.einsum('bhqk,bhke->bhqe', p, v)
            o = torch.einsum('bhte,hed->btd', o, Wo)
            mem = o[:, :M, :].clone()
            outs.append(o[:, M:, :])
        return torch.concatenate(outs, axis=1)
    x = A_u
    g = _sigmoid((x * gate_w).sum(-1, keepdims=True))
    a = _A_ref(x, A_A_re, A_A_im, A_B_re, A_B_im, A_C_re, A_C_im, A_log_dt, A_Dskip)
    b = _B_ref(x, B_mem0, B_Wq, B_Wk, B_Wv, B_Wo, B_seg_len)
    return g * a + (1 - g) * b
```

```python
import re

def vr(a, n=1):
    return f"v{a}" if n == 1 else f"v[{a}:{a+n-1}]"
def ar(a, n=1):
    return f"a{a}" if n == 1 else f"a[{a}:{a+n-1}]"
def sr(a, n=1):
    return f"s{a}" if n == 1 else f"s[{a}:{a+n-1}]"

_REG = re.compile(r"^(-|\|)?(?:abs\()?([vas])(?:(\d+)|\[(\d+):(\d+)\])\)?\|?$")

def parse_reg(tok):
    tok = tok.strip()
    if tok in ("vcc",):
        return [("s", 106), ("s", 107)]
    if tok == "vcc_lo": return [("s", 106)]
    if tok == "vcc_hi": return [("s", 107)]
    if tok == "exec": return [("s", 126), ("s", 127)]
    if tok == "m0": return [("s", 124)]
    m = _REG.match(tok)
    if not m:
        return []
    k = m.group(2)
    if m.group(3) is not None:
        return [(k, int(m.group(3)))]
    return [(k, i) for i in range(int(m.group(4)), int(m.group(5)) + 1)]

TRANS = ("v_exp_f32", "v_log_f32", "v_rcp_f32", "v_rsq_f32", "v_sqrt_f32", "v_sin_f32", "v_cos_f32", "v_rcp_iflag_f32")

def mfma_info(op):
    if op.startswith("v_smfmac"):
        if "16x16x64" in op or "16x16x32" in op: return ("xdl", 4)
        return ("xdl", 8)
    if op.startswith("v_mfma"):
        if op.endswith("_f32") and ("32x32x2" in op): return ("sgemm", 16)
        if op.endswith("_f32") and ("16x16x4" in op): return ("sgemm", 8)
        if "32x32x16" in op or "32x32x8" in op: return ("xdl", 8)
        if "16x16x32" in op or "16x16x16" in op: return ("xdl", 4)
        raise ValueError("unknown mfma " + op)
    return None

class Ins:
    __slots__ = ("text", "op", "kind", "wr", "rd", "srcc", "ab", "ws", "dpp", "mf", "store_data", "wide_store")

def analyze(text):
    ins = Ins()
    ins.text = text
    t = text.split(";")[0].strip()
    parts = t.split(None, 1)
    op = parts[0]
    ins.op = op
    rest = parts[1] if len(parts) > 1 else ""
    ops = []
    depth = 0; cur = ""
    for ch in rest:
        if ch in "[(": depth += 1
        if ch in "])": depth -= 1
        if ch == "," and depth == 0:
            ops.append(cur.strip()); cur = ""
        else:
            cur += ch
    if cur.strip(): ops.append(cur.strip())
    mods = ""
    if ops:
        last = ops[-1].split(None, 1)
        ops[-1] = last[0]
        if len(last) > 1: mods = last[1]
    ins.dpp = ("quad_perm" in mods or "row_" in mods or "dpp" in op)
    ins.mf = mfma_info(op)
    ins.wr = []; ins.rd = []; ins.srcc = []; ins.ab = []; ins.store_data = []; ins.wide_store = False
    ins.ws = 1
    R = [parse_reg(o) for o in ops]
    if op == "s_nop":
        ins.kind = "nop"; ins.ws = int(ops[0], 0) + 1; return ins
    if op.startswith("s_"):
        ins.kind = "salu"
        if op.startswith(("s_cmp", "s_cbranch", "s_branch", "s_waitcnt", "s_barrier", "s_sleep", "s_endpgm", "s_setprio", "s_bitcmp")):
            for r in R: ins.rd += r
        elif op.startswith(("s_load", "s_buffer_load", "s_memtime", "s_memrealtime", "s_getreg")):
            ins.kind = "smem" if not op.startswith("s_getreg") else "salu"
            ins.wr = R[0]
            for r in R[1:]: ins.rd += r
        else:
            ins.wr = R[0] if R else []
            for r in R[1:]: ins.rd += r
            if "saveexec" in op: ins.wr = ins.wr + [("s", 126), ("s", 127)]
        return ins
    if ins.mf:
        ins.kind = "mfma"
        ins.wr = R[0]
        ins.ab = R[1] + R[2]
        if op.startswith("v_smfmac"):
            ins.srcc = R[0]; ins.ab = ins.ab + R[3]
        else:
            ins.srcc = R[3]
        ins.rd = ins.ab + ins.srcc
        return ins
    if op.startswith("ds_"):
        ins.kind = "ds"
        if op.startswith(("ds_read", "ds_bpermute", "ds_permute", "ds_swizzle")) or "_rtn" in op:
            ins.wr = R[0]
            for r in R[1:]: ins.rd += r
        else:
            for r in R: ins.rd += r
        return ins
    if op.startswith(("buffer_", "global_")):
        ins.kind = "vmem"
        is_load = "load" in op
        is_atomic = "atomic" in op
        if "lds" in mods.split() or "_lds_" in op:
            for r in R: ins.rd += r
            ins.rd += [("s", 124)]
        elif is_load:
            ins.wr = R[0]
            for r in R[1:]: ins.rd += r
            if "d16" in op: ins.rd += R[0]
        elif is_atomic:
            for r in R: ins.rd += r
            if "sc0" in mods.split():
                ins.wr = R[0] if op.startswith("buffer") else R[0]
        else:
            for r in R: ins.rd += r
            ins.store_data = R[0] if op.startswith("buffer") else R[1]
            ins.wide_store = ("x3" in op or "x4" in op)
        return ins
    if op.startswith("v_"):
        ins.kind = "valu"
        if op.startswith("v_cmp"):
            ins.wr = R[0]
            for r in R[1:]: ins.rd += r
        elif op.startswith("v_permlane") and "swap" in op:
            ins.wr = R[0] + R[1]; ins.rd = R[0] + R[1]
        elif op.startswith(("v_add_co", "v_sub_co", "v_addc_co", "v_subb_co", "v_div_scale", "v_mad_u64")):
            ins.wr = R[0] + R[1]
            for r in R[2:]: ins.rd += r
        else:
            ins.wr = R[0]
            for r in R[1:]: ins.rd += r
            if op.startswith(("v_fmac", "v_pk_fmac", "v_writelane", "v_dot2c")) or (ins.dpp):
                ins.rd += R[0]
            if op.startswith("v_cndmask") and len(R) == 3:
                ins.rd += [("s", 106), ("s", 107)]
        return ins
    raise ValueError("cannot analyze: " + text)

XDL_VALU = {2: 5, 4: 8, 8: 12, 16: 20}
SG_VALU = {2: 4, 4: 6, 8: 10, 16: 18}
XDL_OVL = {2: 4, 4: 6, 8: 10, 16: 18}
SG_OVL = {2: 2, 4: 4, 8: 8, 16: 16}
XDL_WAR = {2: 1, 4: 3, 8: 7, 16: 15}

def required_gap(p, c):
    need = 0
    pw = set(p.wr)
    if p.kind == "valu":
        vw = {r for r in pw if r[0] in "va"}
        sw = {r for r in pw if r[0] == "s"}
        if c.kind == "mfma" and vw & set(c.rd): need = max(need, 2)
        if c.kind == "valu":
            if (c.op.startswith("v_permlane") or c.dpp) and vw & set(c.rd): need = max(need, 2)
            if c.op.startswith(("v_readlane", "v_readfirstlane")) and vw & set(c.rd): need = max(need, 1)
            if p.op.startswith(TRANS) and not c.op.startswith(TRANS) and vw & set(c.rd): need = max(need, 1)
            if sw & set(c.rd):
                need = max(need, 4 if c.op.startswith(("v_readlane", "v_writelane")) else 2)
        if c.kind == "vmem" and sw & set(c.rd): need = max(need, 5)
        if c.kind in ("salu",) and sw & set(c.rd): need = max(need, 1)
    if p.kind == "salu" and ("s", 124) in pw and c.kind in ("vmem", "ds") and ("s", 124) in c.rd:
        need = max(need, 1)
    if p.kind == "mfma":
        cls, ps = p.mf
        if c.kind == "mfma":
            if pw & set(c.ab): need = max(need, (XDL_VALU if cls == "xdl" else SG_VALU)[ps])
            if pw & set(c.srcc):
                if list(c.srcc) == list(p.wr) and c.mf == p.mf:
                    need = max(need, 2 if ps == 2 else 0)
                else:
                    need = max(need, (XDL_OVL if cls == "xdl" else SG_OVL)[ps])
            elif pw & set(c.wr):
                need = max(need, (XDL_VALU if cls == "xdl" else SG_VALU)[ps])
        elif c.kind in ("valu", "ds", "vmem"):
            if pw & (set(c.rd) | set(c.wr)): need = max(need, (XDL_VALU if cls == "xdl" else SG_VALU)[ps])
        if c.kind == "valu" and cls == "xdl" and set(p.srcc) & set(c.wr):
            need = max(need, XDL_WAR[ps])
    if p.kind == "vmem" and p.wide_store and set(p.store_data) & set(c.wr):
        need = max(need, 2)
    return need

class Asm:
    def __init__(self):
        self.items = []
    def __call__(self, text):
        for line in text.strip().split("\n"):
            line = line.strip()
            if line.startswith(";"):
                self.items.append(("raw", "    " + line))
            elif line:
                self.items.append(("i", line))
    def label(self, name):
        self.items.append(("l", name))
    def raw(self, text):
        self.items.append(("raw", text))
    def comment(self, text):
        self.items.append(("raw", "    ; " + text))
    def render(self):
        out = []
        hist = []
        nnop = 0
        for kind, text in self.items:
            if kind == "raw":
                out.append(text); continue
            if kind == "l":
                out.append(text + ":")
                continue
            ins = analyze(text)
            dist = 0
            need_extra = 0
            for p in reversed(hist):
                g = required_gap(p, ins)
                if g > dist:
                    need_extra = max(need_extra, g - dist)
                dist += p.ws
                if dist >= 20: break
            while need_extra > 0:
                n = min(need_extra, 16)
                nop = analyze(f"s_nop {n-1}")
                out.append(f"    s_nop {n-1}")
                hist.append(nop); need_extra -= n; nnop += 1
            out.append("    " + text)
            hist.append(ins)
            if len(hist) > 40: hist = hist[-40:]
            if ins.op in ("s_branch", "s_endpgm"):
                hist = []
        return "\n".join(out) + "\n"
```

```python
WS_SIZE = 0x10000000
FLG   = 0x0
FLG_BYTES = 0x4000
F_KM  = 0x0
F_KV  = 0x400
F_OX  = 0x1000
F_S4  = 0x2000
F_G   = 0x2040
MEM   = 0x100000
PART  = 0x200000
PART_SLOT = 294912
KM    = 0x6000000
VM    = 0x800000
QX    = 0x1000000
KX    = 0x2000000
VX    = 0x3000000
OX    = 0x4000000
AT    = 0x5000000
GT    = 0x5400000
D_CNT = 0
D_CHOSEN = 16
D_TEAMBAR = 17
D_INIT = 18
D_MASK = 20
L_SH = 147456
L_SC = 156672
L_REG = 1792
```

```python
from asmlib import *
from layout import *
from team import *

S_RANK = 33
S_TILE = 40; S_RB = 41; S_HD = 42; S_KOFF = 43; S_WOFF = 44; S_CNT = 45; S_XS = 46
S_X = 48

def gen_qkv(a):
    WSR = f"s[{S_WS}:{S_WS+3}]"; XR = f"s[{S_X}:{S_X+3}]"
    SR = [f"s[{s}:{s+3}]" for s in (S_A, S_B, S_C)]
    vL, vXo, vDo, vT00, vT01, vT10, vT11, vtid = 1, 2, 3, 4, 5, 6, 7, 8
    EW = 10
    vVW, vRD, vGQ, vGV = 18, 19, 20, 21
    XB = [32, 64]
    WF = [96, 120]
    def acc(m, mt, nt): return 16 * ((m * 2 + mt) * 2 + nt)
    a.label("QKV")
    a(f"""
    v_mov_b32 v{vtid}, v0
    v_and_b32 v{vL}, 63, v0
    s_load_dwordx2 s[{S_X}:{S_X+1}], s[0:1], 0
    s_lshr_b32 s{S_T0}, s{S_W}, 1          ; rh
    s_and_b32 s{S_T1}, s{S_W}, 1           ; ch
    v_and_b32 v24, 31, v{vL}
    s_lshl_b32 s{S_T2}, s{S_T0}, 6
    v_add_u32 v24, s{S_T2}, v24
    v_mul_u32_u24 v24, 1152, v24
    v_lshrrev_b32 v25, 5, v{vL}
    v_lshl_add_u32 v{vXo}, v25, 4, v24
    v_lshrrev_b32 v24, 4, v{vL}
    v_and_b32 v25, 15, v{vL}
    v_lshlrev_b32 v26, 2, v24
    v_xor_b32 v25, v25, v26
    s_lshl_b32 s{S_T2}, s{S_W}, 2
    v_add_u32 v24, s{S_T2}, v24
    v_lshlrev_b32 v24, 13, v24
    v_lshl_add_u32 v{vDo}, v25, 4, v24
    v_bfe_u32 v24, v{vL}, 2, 2             ; r
    v_lshrrev_b32 v25, 5, v{vL}            ; q>>1
    v_lshl_add_u32 v25, v25, 3, v24        ; row
    v_bfe_u32 v26, v{vL}, 4, 1
    v_bfe_u32 v27, v{vL}, 1, 1
    v_lshl_add_u32 v26, v26, 1, v27
    s_lshl_b32 s{S_T2}, s{S_T1}, 3
    v_add_u32 v26, s{S_T2}, v26            ; cc
    v_lshlrev_b32 v24, 2, v24
    v_xor_b32 v26, v26, v24
    v_lshlrev_b32 v26, 4, v26
    v_lshl_add_u32 v26, v25, 8, v26
    v_and_b32 v27, 1, v{vL}
    v_lshl_add_u32 v{vT00}, v27, 3, v26
    v_xor_b32 v{vT01}, 64, v{vT00}
    v_add_u32 v{vT10}, 49152, v{vT00}
    v_add_u32 v{vT11}, 49152, v{vT01}
    v_and_b32 v24, 31, v{vL}
    v_and_b32 v25, 15, v{vL}
    s_lshl_b32 s{S_T2}, s{S_T1}, 3
    v_xor_b32 v25, s{S_T2}, v25
    v_lshlrev_b32 v25, 4, v25
    v_lshl_add_u32 v25, v24, 8, v25
    v_lshrrev_b32 v26, 5, v{vL}
    v_lshl_add_u32 v25, v26, 3, v25
    s_mul_i32 s{S_T2}, s{S_T0}, 49152
    v_add_u32 v{EW}, s{S_T2}, v25
    """)
    for k in range(1, 8): a(f"v_xor_b32 v{EW+k}, {16*k}, v{EW}")
    a(f"""
    s_lshl_b32 s{S_T3}, s{S_T1}, 12
    s_add_u32 s{S_T2}, s{S_T2}, s{S_T3}
    s_add_u32 s{S_T2}, s{S_T2}, 16384
    v_lshlrev_b32 v24, 6, v24
    v_lshl_add_u32 v24, v26, 4, v24
    v_add_u32 v{vVW}, s{S_T2}, v24
    v_lshlrev_b32 v{vRD}, 4, v{vtid}
    v_lshrrev_b32 v24, 4, v{vtid}
    v_and_b32 v25, 15, v{vtid}
    v_xor_b32 v25, v25, v24
    v_lshlrev_b32 v25, 4, v25
    v_lshl_add_u32 v{vGQ}, v24, 8, v25
    s_waitcnt lgkmcnt(0)
    s_and_b32 s{S_X+1}, s{S_X+1}, 0xffff
    s_mov_b32 s{S_X+2}, 2359296
    s_mov_b32 s{S_X+3}, 0x00020000
    s_mov_b32 s{S_TILE}, s{S_RANK}
    """)
    a.label("QKV_TILE")
    a(f"""
    s_cmp_ge_u32 s{S_TILE}, 512
    s_cbranch_scc1 QKV_DONE
    s_lshr_b32 s{S_RB}, s{S_TILE}, 5
    s_and_b32 s{S_HD}, s{S_TILE}, 31
    s_mul_i32 s{S_KOFF}, s{S_RB}, {128*1152}
    s_lshl_b32 s{S_WOFF}, s{S_HD}, 8
    """)
    def issue(buf):
        for m in range(3):
            for u in range(4):
                a(f"s_lshl_b32 s{S_T0}, s{S_W}, 10")
                a(f"s_add_u32 m0, s{S_T0}, {buf*49152 + m*16384 + u*4096}")
                a(f"s_add_u32 s{S_T1}, s{S_WOFF}, {u*131072}")
                a(f"buffer_load_dwordx4 v{vDo}, {SR[m]}, s{S_T1} offen lds")
        a(f"s_add_u32 s{S_T1}, s{S_KOFF}, 36864")
        for ks in range(4):
            for mt in range(2):
                b = XB[buf] + 8 * ks + 4 * mt
                so = S_KOFF if mt == 0 else S_T1
                a(f"buffer_load_dwordx4 v[{b}:{b+3}], v{vXo}, {XR}, s{so} offen offset:{32*ks}")
        a(f"s_add_u32 s{S_KOFF}, s{S_KOFF}, 128")
        a(f"s_add_u32 s{S_WOFF}, s{S_WOFF}, 524288")
    def wreads(buf, ks):
        for m in range(3):
            for nt in range(2):
                b = WF[ks % 2] + 8 * m + 4 * nt
                ad = [[vT00, vT01], [vT10, vT11]][buf][nt]
                for hh in range(2):
                    a(f"ds_read_b64_tr_b16 v[{b+2*hh}:{b+2*hh+1}], v{ad} offset:{m*16384 + ks*4096 + hh*1024}")
    def compute(buf, first):
        wreads(buf, 0)
        for ks in range(4):
            if ks < 3:
                wreads(buf, ks + 1)
                a("s_waitcnt lgkmcnt(12)")
            else:
                a("s_waitcnt lgkmcnt(0)")
            for m in range(3):
                for nt in range(2):
                    for mt in range(2):
                        w = vr(WF[ks % 2] + 8 * m + 4 * nt, 4); x = vr(XB[buf] + 8 * ks + 4 * mt, 4)
                        d = ar(acc(m, mt, nt), 16)
                        c = "0" if (first and ks == 0) else d
                        if m < 2: a(f"v_mfma_f32_32x32x16_bf16 {d}, {w}, {x}, {c}")
                        else: a(f"v_mfma_f32_32x32x16_bf16 {d}, {x}, {w}, {c}")
    issue(0)
    a("s_waitcnt vmcnt(0)\ns_barrier")
    issue(1)
    compute(0, True)
    a(f"s_mov_b32 s{S_CNT}, 0")
    a.label("QKV_LOOP")
    a("s_waitcnt vmcnt(0)\ns_barrier")
    issue(0)
    compute(1, False)
    a("s_waitcnt vmcnt(0)\ns_barrier")
    a(f"s_cmp_eq_u32 s{S_CNT}, 3")
    a("s_cbranch_scc1 QKV_LASTC")
    issue(1)
    a.label("QKV_LASTC")
    compute(0, False)
    a(f"""
    s_add_u32 s{S_CNT}, s{S_CNT}, 1
    s_cmp_lt_u32 s{S_CNT}, 4
    s_cbranch_scc1 QKV_LOOP
    s_nop 15
    s_barrier
    """)
    T = 32
    for m in range(2):
        for mt in range(2):
            for nt in range(2):
                base = acc(m, mt, nt)
                for r in range(16): a(f"v_accvgpr_read_b32 v{T+r}, a{base+r}")
                for q in range(4):
                    a(f"v_cvt_pk_bf16_f32 v{T+16+2*q}, v{T+4*q}, v{T+4*q+1}")
                    a(f"v_cvt_pk_bf16_f32 v{T+17+2*q}, v{T+4*q+2}, v{T+4*q+3}")
                for q in range(4):
                    a(f"ds_write_b64 v{EW+4*nt+q}, v[{T+16+2*q}:{T+17+2*q}] offset:{mt*24576 + m*8192}")
                T = 96 - T
    for mt in range(2):
        for nt in range(2):
            base = acc(2, mt, nt)
            for r in range(16): a(f"v_accvgpr_read_b32 v{T+r}, a{base+r}")
            for qp in range(2):
                a(f"v_cvt_pk_bf16_f32 v{T+16+4*qp}, v{T+4*qp}, v{T+4*qp+1}")
                a(f"v_cvt_pk_bf16_f32 v{T+17+4*qp}, v{T+4*qp+2}, v{T+4*qp+3}")
                a(f"v_cvt_pk_bf16_f32 v{T+18+4*qp}, v{T+8+4*qp}, v{T+8+4*qp+1}")
                a(f"v_cvt_pk_bf16_f32 v{T+19+4*qp}, v{T+8+4*qp+2}, v{T+8+4*qp+3}")
            for qp in range(2):
                a(f"ds_write_b128 v{vVW}, v[{T+16+4*qp}:{T+19+4*qp}] offset:{mt*24576 + nt*2048 + qp*32}")
            T = 96 - T
    a("s_waitcnt lgkmcnt(0)\ns_barrier")
    a(f"""
    s_lshl_b32 s{S_T0}, s{S_RB}, 7
    s_add_u32 s{S_T0}, s{S_T0}, s{S_HD}
    s_lshl_b32 s{S_T0}, s{S_T0}, 13          ; ((4rb)*32 + h)*8192
    """)
    R = 32
    regions = [QX, KX, VX]
    n = 0
    for m in (1, 2, 0):
        for sg in range(4):
            for u in range(2):
                off = sg * 24576 + m * 8192 + u * 4096
                b = R + 4 * n
                if off < 65536: a(f"ds_read_b128 v[{b}:{b+3}], v{vRD} offset:{off}")
                else:
                    a(f"v_add_u32 v24, 65536, v{vRD}")
                    a(f"ds_read_b128 v[{b}:{b+3}], v24 offset:{off-65536}")
                n += 1
    n = 0
    for m in (1, 2, 0):
        for sg in range(4):
            for u in range(2):
                b = R + 4 * n
                if n % 4 == 0: a(f"s_waitcnt lgkmcnt({min(15, 24-n-4)})")
                a(f"s_add_u32 s{S_T1}, s{S_T0}, {regions[m] + sg*32*8192 + u*4096}")
                a(f"buffer_store_dwordx4 v[{b}:{b+3}], v{vGQ if m < 2 else vRD}, {WSR}, s{S_T1} offen sc1")
                n += 1
    a(f"""
    s_waitcnt vmcnt(0)
    s_barrier
    s_cmp_lg_u32 s{S_W}, 0
    s_cbranch_scc1 QKV_NEXT
    s_lshl_b32 s{S_T0}, 1, s{S_HD}
    s_lshl_b32 s{S_T1}, s{S_RB}, 6
    s_add_u32 s{S_T1}, s{S_T1}, {FLG+F_KV}
    v_mov_b32 v24, s{S_T0}
    v_mov_b32 v25, s{S_T1}
    s_mov_b64 exec, 1
    buffer_atomic_or v24, v25, {WSR}, 0 offen
    s_mov_b64 exec, -1
    """)
    a.label("QKV_NEXT")
    a(f"""
    s_add_u32 s{S_TILE}, s{S_TILE}, 224
    s_branch QKV_TILE
    """)
    a.label("QKV_DONE")
```

```python
from asmlib import *
from layout import *
from team import *
from qkv import S_RANK, S_X

UCS = 4176; KH = 16704; KL = 24304; TB = 31904; PR = 34480; WREG = 40960
S_D0 = 40; S_WB = 41; S_CH = 42; S_IT = 43
S_P = 52

def gen_s4(a):
    WSR = f"s[{S_WS}:{S_WS+3}]"; XR = f"s[{S_X}:{S_X+3}]"; PS = f"s[{S_P}:{S_P+3}]"
    a.label("S4")
    a(f"""
    s_cmp_lt_u32 s{S_RANK}, 80
    s_cbranch_scc1 S4_DONE
    s_sub_u32 s{S_D0}, s{S_RANK}, 80
    s_lshl_b32 s{S_D0}, s{S_D0}, 2
    s_add_u32 s{S_CH}, s{S_D0}, s{S_W}
    s_mul_i32 s{S_WB}, s{S_W}, {WREG}
    v_and_b32 v1, 63, v0
    v_lshlrev_b32 v2, 4, v1
    v_add_u32 v2, s{S_WB}, v2
    v_mov_b32 v4, 0
    v_mov_b32 v5, 0
    v_mov_b32 v6, 0
    v_mov_b32 v7, 0
    s_barrier
    """)
    for k in range(32): a(f"ds_write_b128 v2, v[4:7] offset:{1024*k}")
    a(f"""
    v_mul_u32_u24 v3, 1152, v0
    s_lshl_b32 s{S_T0}, s{S_D0}, 1
    """)
    for k in range(8):
        a(f"buffer_load_dwordx2 v[{16+2*k}:{17+2*k}], v3, {XR}, s{S_T0} offen")
        if k < 7: a(f"s_add_u32 s{S_T0}, s{S_T0}, {256*1152}")
    a(f"""
    v_lshlrev_b32 v3, 1, v1
    s_lshl_b32 s{S_T0}, s{S_CH}, 8
    s_mov_b32 s{S_P+2}, 147456
    s_mov_b32 s{S_P+3}, 0x00020000
    """)
    for j, karg in enumerate((8, 16, 24, 32, 40, 48)):
        a(f"""
        s_load_dwordx2 s[{S_P}:{S_P+1}], s[0:1], {karg}
        s_waitcnt lgkmcnt(0)
        s_and_b32 s{S_P+1}, s{S_P+1}, 0xffff
        buffer_load_ushort v{32+2*j}, v3, {PS}, s{S_T0} offen
        buffer_load_ushort v{33+2*j}, v3, {PS}, s{S_T0} offen offset:128
        s_nop 0
        """)
    a(f"""
    s_load_dwordx2 s[{S_P}:{S_P+1}], s[0:1], 56
    s_waitcnt lgkmcnt(0)
    s_and_b32 s{S_P+1}, s{S_P+1}, 0xffff
    s_mov_b32 s{S_P+2}, 1152
    s_lshl_b32 s{S_T0}, s{S_CH}, 1
    v_mov_b32 v3, 0
    buffer_load_ushort v44, v3, {PS}, s{S_T0} offen
    s_barrier
    ; scatter u
    v_sub_u32 v8, 255, v0
    v_lshlrev_b32 v8, 1, v8
    v_add_u32 v9, {2*WREG}, v8
    s_waitcnt vmcnt(13)
    """)
    for k in range(8):
        for ch in range(4):
            for c in range(4):
                op = "ds_write_b16" if ch % 2 == 0 else "ds_write_b16_d16_hi"
                ad = 8 if ch < 2 else 9
                a(f"{op} v{ad}, v{16+2*k+ch//2} offset:{(ch%2)*WREG + c*(UCS+2) + 512*(7-k)}")
    a(f"""
    s_waitcnt vmcnt(0)
    s_mov_b32 s{S_T0}, 0x3fb8aa3b
    s_mov_b32 s{S_T1}, 0x3e22f983
    v_lshlrev_b32 v44, 16, v44
    v_mul_f32 v44, s{S_T0}, v44
    v_exp_f32 v44, v44
    v_cvt_pk_bf16_f32 v44, v44, v44
    v_lshlrev_b32 v44, 16, v44               ; dt
    v_add_u32 v2, {PR}, v2
    """)
    for hf in range(2):
        ar_, ai, br, bi, cr, ci = [32 + 2 * j + hf for j in range(6)]
        for x in (ar_, ai, br, bi, cr, ci): a(f"v_lshlrev_b32 v{x}, 16, v{x}")
        a(f"""
        v_mul_f32 v{ar_}, v44, v{ar_}
        v_mul_f32 v{ai}, v44, v{ai}
        v_mul_f32 v{br}, v44, v{br}
        v_mul_f32 v{bi}, v44, v{bi}
        v_mul_f32 v48, s{S_T0}, v{ar_}
        v_mul_f32 v49, s{S_T1}, v{ai}
        v_mul_f32 v50, v{cr}, v{br}
        v_fma_f32 v50, -v{ci}, v{bi}, v50
        v_mul_f32 v51, v{cr}, v{bi}
        v_fma_f32 v51, v{ci}, v{br}, v51
        ds_write_b128 v2, v[48:51] offset:{1024*hf}
        """)
    D = 64
    a(f"""
    v_and_b32 v10, 15, v1                    ; i
    v_lshrrev_b32 v11, 4, v1                 ; kq / g
    v_cvt_f32_u32 v12, v10                   ; mE
    v_cmp_eq_u32 s[60:61], 0, v10
    v_mov_b32 v13, 16
    v_cndmask_b32 v13, v10, v13, s[60:61]
    v_lshlrev_b32 v13, 4, v13
    v_cvt_f32_u32 v13, v13                   ; mG
    v_lshlrev_b32 v14, 4, v11
    v_add_u32 v14, s{S_WB}, v14
    v_add_u32 v14, {PR}, v14
    s_mov_b32 s{S_IT}, 0
    s_waitcnt lgkmcnt(0)
    """)
    for r in range(16): a(f"v_mov_b32 v{D+r}, 0")
    a("ds_read_b128 v[48:51], v14")
    a.label("S4_KG")
    Gr, Gi, Er, Ei, Fr, Fi, t0, t1 = 20, 21, 22, 23, 24, 25, 26, 27
    a(f"""
    s_waitcnt lgkmcnt(0)
    v_mul_f32 v{t0}, v48, v13
    v_mul_f32 v{t1}, v49, v13
    v_mul_f32 v28, v48, v12
    v_mul_f32 v29, v49, v12
    v_mov_b32 v52, v50
    v_mov_b32 v53, v51
    v_add_u32 v14, 64, v14
    ds_read_b128 v[48:51], v14
    v_exp_f32 v{t0}, v{t0}
    v_fract_f32 v{t1}, v{t1}
    v_exp_f32 v28, v28
    v_fract_f32 v29, v29
    v_cos_f32 v{Gr}, v{t1}
    v_sin_f32 v{Gi}, v{t1}
    v_cos_f32 v{Er}, v29
    v_sin_f32 v{Ei}, v29
    v_mul_f32 v{Gr}, v{Gr}, v{t0}
    v_mul_f32 v{Gi}, v{Gi}, v{t0}
    v_mul_f32 v{Er}, v{Er}, v28
    v_mul_f32 v{Ei}, v{Ei}, v28
    v_cndmask_b32 v30, v{Gr}, 1.0, s[60:61]
    v_cndmask_b32 v31, v{Gi}, 0, s[60:61]
    """)
    for rho in range(4):
        gr, gi = (30, 31) if rho == 0 else (Gr, Gi)
        F = 54 + 2 * rho
        E2 = 34 + 2 * rho
        a(f"""
        v_mul_f32 v{F}, v52, v{gr}
        v_fma_f32 v{F}, -v53, v{gi}, v{F}
        v_mul_f32 v{F+1}, v52, v{gi}
        v_fma_f32 v{F+1}, v53, v{gr}, v{F+1}
        v_mov_b32 v{E2}, v{Er}
        v_sub_f32 v{E2+1}, 0, v{Ei}
        """)
        if rho < 3:
            a(f"""
            v_mul_f32 v{t0}, v{Gi}, v{Gi}
            v_mul_f32 v{t1}, v{Gr}, v{Gi}
            v_fma_f32 v{Gr}, v{Gr}, v{Gr}, -v{t0}
            v_add_f32 v{Gi}, v{t1}, v{t1}
            v_mul_f32 v{t0}, v{Ei}, v{Ei}
            v_mul_f32 v{t1}, v{Er}, v{Ei}
            v_fma_f32 v{Er}, v{Er}, v{Er}, -v{t0}
            v_add_f32 v{Ei}, v{t1}, v{t1}
            """)
        a(f"v_mfma_f32_16x16x4_f32 v[{D+4*rho}:{D+4*rho+3}], v{F}, v{E2}, v[{D+4*rho}:{D+4*rho+3}]")
        a(f"v_mfma_f32_16x16x4_f32 v[{D+4*rho}:{D+4*rho+3}], v{F+1}, v{E2+1}, v[{D+4*rho}:{D+4*rho+3}]")
    a(f"""
    s_add_u32 s{S_IT}, s{S_IT}, 1
    s_cmp_lt_u32 s{S_IT}, 32
    s_cbranch_scc1 S4_KG
    s_waitcnt lgkmcnt(0)
    s_nop 15
    v_lshl_add_u32 v14, v11, 6, v10
    v_lshlrev_b32 v14, 2, v14
    v_add_u32 v14, s{S_WB}, v14
    v_add_u32 v14, {TB}, v14
    v_cmp_gt_u32 vcc, 2, v11
    v_mov_b32 v15, 0x100000
    v_cndmask_b32 v15, v14, v15, vcc
    """)
    for rr in range(4): a(f"ds_write_b32 v14, v{D+rr} offset:{64*rr}")
    for rho in range(1, 4):
        for rr in range(4): a(f"ds_write_b32 v15, v{D+4*rho+rr} offset:{64*rr + 512*rho}")
    a(f"""
    s_mov_b64 exec, 1
    ds_write_b32 v14, v{D+12} offset:2560
    s_mov_b64 exec, -1
    ; expand
    v_lshlrev_b32 v16, 1, v1                 ; l0 = 2*lane
    v_lshrrev_b32 v17, 4, v1
    v_mul_u32_u24 v17, 80, v17
    v_lshl_add_u32 v17, v10, 2, v17
    v_add_u32 v17, s{S_WB}, v17
    s_add_u32 s{S_T0}, s{S_WB}, {TB + 4*(256-0x4380)}
    s_add_u32 s{S_T1}, s{S_WB}, {TB}
    s_mov_b32 s{S_T2}, 0xffff0000
    s_waitcnt lgkmcnt(0)
    """)
    for k in range(16):
        b = 32 + 2 * k
        if k < 2:
            a(f"""
            v_lshl_add_u32 v18, v16, 2, s{S_T1}
            ds_read_b64 v[{b}:{b+1}], v18 offset:{512*k}
            """)
        else:
            a(f"""
            v_add_u32 v18, {128*k}, v16
            v_add_u32 v19, {128*k+1}, v16
            v_cvt_f32_u32 v18, v18
            v_cvt_f32_u32 v19, v19
            v_cvt_pk_bf16_f32 v18, v18, v19
            v_lshrrev_b32 v19, 16, v18
            v_and_b32 v18, 0xffff, v18
            v_lshl_add_u32 v18, v18, 2, s{S_T0}
            v_lshl_add_u32 v19, v19, 2, s{S_T0}
            ds_read_b32 v{b}, v18
            ds_read_b32 v{b+1}, v19
            """)
        if k % 4 == 3: a("s_waitcnt lgkmcnt(0)")
    for k in range(16):
        b = 32 + 2 * k
        a(f"""
        v_cvt_pk_bf16_f32 v18, v{b}, v{b+1}
        v_lshlrev_b32 v19, 16, v18
        v_and_b32 v20, s{S_T2}, v18
        v_sub_f32 v19, v{b}, v19
        v_sub_f32 v20, v{b+1}, v20
        v_cvt_pk_bf16_f32 v19, v19, v20
        ds_write_b32 v17, v18 offset:{KH + 31*80 + 320*k}
        ds_write_b32 v17, v19 offset:{KL + 31*80 + 320*k}
        """)
    a(f"""
    v_and_b32 v10, 31, v1                    ; b / n
    v_lshrrev_b32 v11, 5, v1                 ; g
    v_add_u32 v12, 1, v10
    v_and_b32 v12, 3, v12                    ; copy c
    v_mul_u32_u24 v13, {UCS+2}, v12
    v_lshlrev_b32 v14, 3, v11
    v_sub_u32 v14, v14, v10
    v_add_u32 v14, {2047-2016}, v14
    v_lshl_add_u32 v13, v14, 1, v13
    v_add_u32 v13, s{S_WB}, v13
    v_mul_u32_u24 v14, 80, v10
    v_lshl_add_u32 v14, v11, 4, v14
    v_add_u32 v14, s{S_WB}, v14              ; B base
    s_waitcnt lgkmcnt(0)
    s_barrier
    """)
    stages = [(eps, ks) for eps in range(64) for ks in range(2)]
    RS = [32, 52, 72]
    lg = Q(a, "lgkmcnt", 15)
    def reads(i):
        eps, ks = stages[i]; b = RS[i % 3]
        a(f"ds_read_b128 v[{b}:{b+3}], v13 offset:{64*(63-eps) + 32*ks}"); lg.issue(i)
        for nt in range(2):
            if nt == 0 and eps > 31: continue
            for hl, base in enumerate((KH, KL)):
                r = b + 4 + 8 * nt + 4 * hl
                a(f"ds_read_b128 v[{r}:{r+3}], v14 offset:{base + (32*nt - eps + 31)*80 + 32*ks}"); lg.issue(i)
    reads(0); reads(1)
    for i, (eps, ks) in enumerate(stages):
        if i + 2 < len(stages): reads(i + 2)
        lg.wait(i)
        b = RS[i % 3]
        for nt in range(2):
            if nt == 0 and eps > 31: continue
            for hl in range(2):
                r = b + 4 + 8 * nt + 4 * hl
                d = ar(16 * nt, 16)
                a(f"v_mfma_f32_32x32x16_bf16 {d}, v[{b}:{b+3}], v[{r}:{r+3}], {'0' if (i == 0 and hl == 0) else d}")
    a(f"""
    s_nop 15
    v_lshlrev_b32 v12, 6, v10
    v_lshl_add_u32 v12, v11, 3, v12
    s_lshl_b32 s{S_T0}, s{S_CH}, 12
    s_add_u32 s{S_T0}, s{S_T0}, {AT}
    """)
    for nt in range(2):
        for r in range(16): a(f"v_accvgpr_read_b32 v{32+r}, a{16*nt+r}")
        for q in range(4):
            o = 48 + 8 * nt + 2 * q
            a(f"v_cvt_pk_bf16_f32 v{o}, v{32+4*q}, v{33+4*q}")
            a(f"v_cvt_pk_bf16_f32 v{o+1}, v{34+4*q}, v{35+4*q}")
            a(f"buffer_store_dwordx2 v[{o}:{o+1}], v12, {WSR}, s{S_T0} offen offset:{2048*nt + 16*q} sc1")
    a(f"""
    s_waitcnt vmcnt(0)
    v_mov_b32 v8, 1
    v_mov_b32 v9, {FLG+F_S4}
    s_mov_b64 exec, 1
    buffer_atomic_add v8, v9, {WSR}, 0 offen
    s_mov_b64 exec, -1
    s_barrier
    """)
    a.label("S4_DONE")
```

```python
from asmlib import *
from layout import *
from team import *
from qkv import S_RANK, S_X

S_S = 40; S_HH = 41; S_TASK = 42; S_CT = 43; S_U = 44; S_O1 = 45; S_O2 = 46; S_O3 = 47
S_DS = 52
S_NEG = 56; S_SC = 57; S_L2E = 58; S_HIM = 59
NATT = 44; ATT0 = 180; NSET = 10

def poll_wave(a, label, voff_reg, soff, nd, cond_ok_branchless):
    pass

def gen_attn(a):
    WSR = f"s[{S_WS}:{S_WS+3}]"
    vL, vRow, vVx, vVm, vO, vT16, vG4 = 1, 2, 3, 4, 5, 6, 7
    Q = 16; KXr = 48; KMr = 80; VXr = 96; VMr = 128
    ST = 144
    PB = 168
    OA = 180
    TM = 244
    a.label("ATT")
    a(f"""
    v_and_b32 v{vL}, 63, v0
    v_and_b32 v{vT16}, 15, v{vL}
    v_lshrrev_b32 v8, 4, v{vL}
    v_lshlrev_b32 v{vG4}, 2, v8
    v_lshlrev_b32 v9, 8, v{vT16}
    v_lshl_add_u32 v{vRow}, v8, 4, v9           ; i*256 + g*16
    v_lshlrev_b32 v9, 6, v{vT16}
    v_lshl_add_u32 v{vVx}, v8, 4, v9            ; i*64 + g*16
    v_and_b32 v10, 1, v8
    v_lshlrev_b32 v9, 4, v{vT16}
    v_lshl_add_u32 v{vVm}, v10, 3, v9           ; i*16 + (g&1)*8
    v_lshlrev_b32 v9, 13, v{vT16}
    v_lshl_add_u32 v{vO}, v8, 4, v9             ; i*8192 + g*16
    s_sub_u32 s{S_TASK}, s{S_RANK}, {ATT0}
    s_mov_b32 s{S_NEG}, 0xce6e6b28              ; -1e9
    s_mov_b32 s{S_SC}, 0x3db504f3
    s_mov_b32 s{S_L2E}, 0x3fb8aa3b
    s_mov_b32 s{S_HIM}, 0xffff0000
    """)
    a.label("ATT_TASK")
    a(f"""
    s_cmp_ge_u32 s{S_TASK}, 512
    s_cbranch_scc1 ATT_DONE
    s_lshr_b32 s{S_S}, s{S_TASK}, 3
    s_and_b32 s{S_HH}, s{S_TASK}, 7
    s_lshl_b32 s{S_HH}, s{S_HH}, 2
    s_add_u32 s{S_HH}, s{S_HH}, s{S_W}
    s_lshr_b32 s{S_T0}, s{S_S}, 2
    s_lshl_b32 s{S_T0}, s{S_T0}, 6
    v_mov_b32 v8, {FLG+F_KV}
    """)
    a.label("ATT_P1")
    a(f"""
    buffer_load_dwordx2 v[10:11], v8, {WSR}, s{S_T0} offen sc1
    s_waitcnt vmcnt(0)
    v_and_b32 v9, v10, v11
    v_readfirstlane_b32 s{S_T1}, v9
    s_lshr_b32 s{S_T1}, s{S_T1}, s{S_HH}
    s_bitcmp1_b32 s{S_T1}, 0
    s_cbranch_scc1 ATT_P1OK
    s_sleep 8
    s_branch ATT_P1
    """)
    a.label("ATT_P1OK")
    a(f"""
    s_lshl_b32 s{S_T0}, s{S_HH}, 6
    s_add_u32 s{S_T0}, s{S_T0}, s{S_S}
    s_lshl_b32 s{S_O1}, s{S_T0}, 13             ; (s*32+h)*8192
    """)
    for tt in range(2):
        a(f"s_add_u32 s{S_T1}, s{S_O1}, {QX + tt*4096}")
        for ks in range(4):
            a(f"buffer_load_dwordx4 v[{Q+16*tt+4*ks}:{Q+16*tt+4*ks+3}], v{vRow}, {WSR}, s{S_T1} offen offset:{64*ks} sc1")
    for jt in range(2):
        a(f"s_add_u32 s{S_T1}, s{S_O1}, {KX + jt*4096}")
        for ks in range(4):
            a(f"buffer_load_dwordx4 v[{KXr+16*jt+4*ks}:{KXr+16*jt+4*ks+3}], v{vRow}, {WSR}, s{S_T1} offen offset:{64*ks} sc1")
    for half in range(2):
        a(f"s_add_u32 s{S_T1}, s{S_O1}, {VX + half*4096}")
        for et in range(4):
            b = VXr + 16 * half + 4 * et
            a(f"buffer_load_dwordx4 v[{b}:{b+3}], v{vVx}, {WSR}, s{S_T1} offen offset:{1024*et} sc1")
    a(f"""
    s_lshl_b32 s{S_T2}, s{S_HH}, 4
    v_mov_b32 v8, {FLG+F_KM}
    """)
    a.label("ATT_P2")
    a(f"""
    buffer_load_dwordx4 v[12:15], v8, {WSR}, s{S_T2} offen sc1
    s_waitcnt vmcnt(0)
    v_min_u32 v12, v12, v13
    v_min3_u32 v12, v12, v14, v15
    v_readfirstlane_b32 s{S_T1}, v12
    s_cmp_gt_u32 s{S_T1}, s{S_S}
    s_cbranch_scc1 ATT_P2OK
    s_sleep 4
    s_branch ATT_P2
    """)
    a.label("ATT_P2OK")
    a(f"""
    s_lshl_b32 s{S_T1}, s{S_T0}, 12
    s_add_u32 s{S_T1}, s{S_T1}, {KM}
    s_lshl_b32 s{S_T2}, s{S_T0}, 11
    s_add_u32 s{S_T2}, s{S_T2}, {VM}
    """)
    for ks in range(4):
        a(f"buffer_load_dwordx4 v[{KMr+4*ks}:{KMr+4*ks+3}], v{vRow}, {WSR}, s{S_T1} offen offset:{64*ks} sc1")
    for et in range(8):
        a(f"buffer_load_dwordx2 v[{VMr+2*et}:{VMr+2*et+1}], v{vVm}, {WSR}, s{S_T2} offen offset:{256*et} sc1")
    def st(jt, tt): return ST + 4 * (jt * 2 + tt)
    for (jt, tt) in ((1, 0), (1, 1), (2, 1)):
        for ks in range(4):
            d = vr(st(jt, tt), 4)
            a(f"v_mfma_f32_16x16x32_bf16 {d}, v[{KXr+16*(jt-1)+4*ks}:{KXr+16*(jt-1)+4*ks+3}], v[{Q+16*tt+4*ks}:{Q+16*tt+4*ks+3}], {'0' if ks == 0 else d}")
    a("s_waitcnt vmcnt(8)")
    for tt in range(2):
        for ks in range(4):
            d = vr(st(0, tt), 4)
            a(f"v_mfma_f32_16x16x32_bf16 {d}, v[{KMr+4*ks}:{KMr+4*ks+3}], v[{Q+16*tt+4*ks}:{Q+16*tt+4*ks+3}], {'0' if ks == 0 else d}")
    a(f"v_cmp_gt_u32 s[60:61], 8, v{vG4}")
    for r in range(4):
        a(f"v_add_u32 v8, {r}, v{vG4}")
        a(f"v_cmp_le_u32 s[{62+2*r}:{63+2*r}], v8, v{vT16}")
    a(f"v_mov_b32 v9, s{S_NEG}")
    for tt in range(2):
        tiles = [(0, tt), (1, tt)] + ([(2, 1)] if tt == 1 else [])
        regs = [st(*x) + r for x in tiles for r in range(4)]
        for rep in range(2):
            for k in range(0, len(regs), 2):
                a(f"v_cvt_pk_bf16_f32 v{TM}, v{regs[k]}, v{regs[k+1]}")
                a(f"v_lshlrev_b32 v{regs[k]}, 16, v{TM}")
                a(f"v_and_b32 v{regs[k+1]}, s{S_HIM}, v{TM}")
            if rep == 0:
                for x in regs: a(f"v_mul_f32 v{x}, s{S_SC}, v{x}")
        for r in range(4):
            a(f"v_cndmask_b32 v{st(0,tt)+r}, v9, v{st(0,tt)+r}, s[60:61]")
            dg = st(1, 0) if tt == 0 else st(2, 1)
            a(f"v_cndmask_b32 v{dg+r}, v9, v{dg+r}, s[{62+2*r}:{63+2*r}]")
        M, T2 = TM + 1, TM + 2
        a(f"v_max3_f32 v{M}, v{regs[0]}, v{regs[1]}, v{regs[2]}")
        k = 3
        while k + 1 < len(regs):
            a(f"v_max3_f32 v{M}, v{M}, v{regs[k]}, v{regs[k+1]}"); k += 2
        if k < len(regs): a(f"v_max_f32 v{M}, v{M}, v{regs[k]}")
        for sw in ("v_permlane16_swap_b32", "v_permlane32_swap_b32"):
            a(f"v_mov_b32 v{T2}, v{M}")
            a(f"{sw} v{T2}, v{M}")
            a(f"v_max_f32 v{M}, v{M}, v{T2}")
        for x in regs:
            a(f"v_sub_f32 v{x}, v{x}, v{M}")
            a(f"v_mul_f32 v{x}, s{S_L2E}, v{x}")
            a(f"v_exp_f32 v{x}, v{x}")
        a(f"v_add_f32 v{M}, v{regs[0]}, v{regs[1]}")
        for x in regs[2:]: a(f"v_add_f32 v{M}, v{M}, v{x}")
        for sw in ("v_permlane16_swap_b32", "v_permlane32_swap_b32"):
            a(f"v_mov_b32 v{T2}, v{M}")
            a(f"{sw} v{T2}, v{M}")
            a(f"v_add_f32 v{M}, v{M}, v{T2}")
        a(f"v_rcp_f32 v{M}, v{M}")
        for x in regs: a(f"v_mul_f32 v{x}, v{x}, v{M}")
        px = PB + 4 * tt; pm = PB + 8 + 2 * tt
        a(f"v_cvt_pk_bf16_f32 v{pm}, v{st(0,tt)}, v{st(0,tt)+1}")
        a(f"v_cvt_pk_bf16_f32 v{pm+1}, v{st(0,tt)+2}, v{st(0,tt)+3}")
        a(f"v_cvt_pk_bf16_f32 v{px}, v{st(1,tt)}, v{st(1,tt)+1}")
        a(f"v_cvt_pk_bf16_f32 v{px+1}, v{st(1,tt)+2}, v{st(1,tt)+3}")
        if tt == 1:
            a(f"v_cvt_pk_bf16_f32 v{px+2}, v{st(2,1)}, v{st(2,1)+1}")
            a(f"v_cvt_pk_bf16_f32 v{px+3}, v{st(2,1)+2}, v{st(2,1)+3}")
        else:
            a(f"v_mov_b32 v{px+2}, 0")
            a(f"v_mov_b32 v{px+3}, 0")
    a("s_waitcnt vmcnt(0)")
    for tt in range(2):
        for et in range(8):
            d = vr(OA + 4 * (tt * 8 + et), 4)
            a(f"v_mfma_f32_16x16x32_bf16 {d}, v[{VXr+4*et}:{VXr+4*et+3}], v[{PB+4*tt}:{PB+4*tt+3}], 0")
    for tt in range(2):
        for et in range(8):
            d = vr(OA + 4 * (tt * 8 + et), 4)
            a(f"v_mfma_f32_16x16x16_bf16 {d}, v[{VMr+2*et}:{VMr+2*et+1}], v[{PB+8+2*tt}:{PB+9+2*tt}], {d}")
    a(f"""
    s_lshl_b32 s{S_T1}, s{S_S}, 18
    s_lshl_b32 s{S_T2}, s{S_HH}, 8
    s_add_u32 s{S_T1}, s{S_T1}, s{S_T2}
    s_add_u32 s{S_T1}, s{S_T1}, {OX}
    s_add_u32 s{S_T2}, s{S_T1}, {16*8192}
    """)
    for tt in range(2):
        for p in range(4):
            b = OA + 4 * (tt * 8 + 2 * p); o = Q + 4 * (tt * 4 + p)
            for k in range(4): a(f"v_cvt_pk_bf16_f32 v{o+k}, v{b+2*k}, v{b+2*k+1}")
            a(f"buffer_store_dwordx4 v[{o}:{o+3}], v{vO}, {WSR}, s{S_T1 if tt == 0 else S_T2} offen offset:{64*p} sc1")
    a(f"""
    s_waitcnt vmcnt(0)
    s_lshl_b32 s{S_T1}, s{S_S}, 6
    s_add_u32 s{S_T1}, s{S_T1}, {FLG+F_OX}
    v_mov_b32 v8, 1
    v_mov_b32 v9, s{S_T1}
    s_mov_b64 exec, 1
    buffer_atomic_add v8, v9, {WSR}, 0 offen
    s_mov_b64 exec, -1
    s_add_u32 s{S_TASK}, s{S_TASK}, {NATT}
    s_branch ATT_TASK
    """)
    a.label("ATT_DONE")
    rt(a, 7)
    a("s_endpgm")

def gen_oproj(a):
    WSR = f"s[{S_WS}:{S_WS+3}]"; XR = f"s[{S_X}:{S_X+3}]"; WO = f"s[{S_D}:{S_D+3}]"; OUTR = f"s[{S_OUT}:{S_OUT+3}]"
    vL, vB, vT16, vG4, vRw, vRr, vXo, vYo = 1, 2, 3, 4, 5, 6, 7, 8
    DSK = 10
    B = 32
    AC = 160
    a.label("OPJ")
    a(f"""
    v_and_b32 v{vL}, 63, v0
    v_and_b32 v{vT16}, 15, v{vL}
    v_lshrrev_b32 v20, 4, v{vL}
    v_lshlrev_b32 v{vG4}, 2, v20
    s_mul_i32 s{S_U}, s{S_RANK}, 3641
    s_lshr_b32 s{S_U}, s{S_U}, 16               ; set
    s_mul_i32 s{S_T0}, s{S_U}, 18
    s_sub_u32 s{S_CT}, s{S_RANK}, s{S_T0}       ; ct
    s_load_dwordx2 s[{S_DS}:{S_DS+1}], s[0:1], 64
    ; B voffset = t*8192 + w*2048 + g*16
    v_lshlrev_b32 v21, 13, v{vT16}
    v_lshl_add_u32 v21, v20, 4, v21
    s_lshl_b32 s{S_T0}, s{S_W}, 11
    v_add_u32 v{vB}, s{S_T0}, v21
    v_lshrrev_b32 v21, 2, v{vL}
    v_mul_u32_u24 v21, 1152, v21
    v_and_b32 v22, 3, v{vL}
    v_lshl_add_u32 v21, v22, 4, v21
    s_lshl_b32 s{S_T0}, s{S_W}, 14
    v_lshlrev_b32 v22, 4, v{vL}
    v_add_u32 v22, s{S_T0}, v22
    v_bfe_u32 v23, v{vL}, 2, 2
    v_add_u32 v23, v23, v{vG4}
    v_lshlrev_b32 v23, 6, v23
    v_and_b32 v24, 3, v{vL}
    v_lshl_add_u32 v23, v24, 3, v23
    v_add_u32 v23, s{S_T0}, v23
    s_mul_i32 s{S_T1}, s{S_W}, {1024*1152}
    s_lshl_b32 s{S_T2}, s{S_CT}, 6
    s_add_u32 s{S_T1}, s{S_T1}, s{S_T2}
    s_waitcnt lgkmcnt(0)
    s_and_b32 s{S_DS+1}, s{S_DS+1}, 0xffff
    s_mov_b32 s{S_DS+2}, 1152
    s_mov_b32 s{S_DS+3}, 0x00020000
    """)
    for pc in range(4):
        for u in range(16):
            a(f"buffer_load_dwordx4 v[{B+4*u}:{B+4*u+3}], v21, {WO}, s{S_T1} offen")
            a(f"s_add_u32 s{S_T1}, s{S_T1}, {16*1152}")
        for u in range(16):
            a(f"s_waitcnt vmcnt({15-u})")
            a(f"ds_write_b128 v22, v[{B+4*u}:{B+4*u+3}] offset:{1024*u}")
        a("s_waitcnt lgkmcnt(0)")
        for kq in range(8):
            kap = pc * 8 + kq
            for c2 in range(2):
                for hh in range(2):
                    d = 8 * kap + 4 * c2 + 2 * hh
                    a(f"ds_read_b64_tr_b16 a[{d}:{d+1}], v23 offset:{kq*2048 + hh*1024 + c2*32}")
            if kq % 2 == 1: a("s_waitcnt lgkmcnt(0)")
    a(f"""
    v_lshlrev_b32 v21, 1, v{vG4}
    s_lshl_b32 s{S_T0}, s{S_CT}, 6
    buffer_load_dwordx2 v[24:25], v21, s[{S_DS}:{S_DS+3}], s{S_T0} offen
    buffer_load_dwordx2 v[26:27], v21, s[{S_DS}:{S_DS+3}], s{S_T0} offen offset:32
    v_lshlrev_b32 v{vRr}, 5, v{vL}
    s_lshl_b32 s{S_T1}, s{S_W}, 11
    v_add_u32 v{vRw}, s{S_T1}, v{vRr}
    v_mul_u32_u24 v{vXo}, 1152, v{vT16}
    v_add_u32 v{vXo}, v{vXo}, v21
    v_lshlrev_b32 v{vYo}, 12, v{vG4}
    v_lshl_add_u32 v{vYo}, v{vT16}, 1, v{vYo}
    s_mov_b32 s{S_HIM}, 0xffff0000
    s_waitcnt vmcnt(0)
    """)
    for k in range(4):
        a(f"v_lshlrev_b32 v{DSK+2*k}, 16, v{24+k}")
        a(f"v_and_b32 v{DSK+2*k+1}, s{S_HIM}, v{24+k}")
    rt(a, 8)
    a(f"v_mov_b32 v20, {FLG+F_S4}")
    a.label("OPJ_P0")
    a(f"""
    buffer_load_dword v21, v20, {WSR}, 0 offen sc1
    buffer_load_dword v22, v20, {WSR}, 0 offen offset:{F_G-F_S4} sc1
    s_waitcnt vmcnt(0)
    v_readfirstlane_b32 s{S_T1}, v21
    v_readfirstlane_b32 s{S_T2}, v22
    s_cmp_lt_u32 s{S_T1}, 576
    s_cbranch_scc1 OPJ_P0W
    s_cmp_ge_u32 s{S_T2}, 64
    s_cbranch_scc1 OPJ_TASK
    """)
    a.label("OPJ_P0W")
    a("s_sleep 16\ns_branch OPJ_P0")
    a.label("OPJ_TASK")
    a(f"""
    s_cmp_ge_u32 s{S_U}, 128
    s_cbranch_scc1 OPJ_DONE
    s_lshr_b32 s{S_S}, s{S_U}, 1
    s_lshl_b32 s{S_T0}, s{S_S}, 6
    v_mov_b32 v20, {FLG+F_OX}
    s_mul_i32 s{S_O1}, s{S_U}, {16*1152}
    s_lshl_b32 s{S_T1}, s{S_CT}, 6
    s_add_u32 s{S_O1}, s{S_O1}, s{S_T1}
    s_and_b32 s{S_T2}, s{S_W}, 1
    s_lshl_b32 s{S_T1}, s{S_T2}, 5
    s_add_u32 s{S_O1}, s{S_O1}, s{S_T1}
    s_lshl_b32 s{S_O2}, s{S_CT}, 17
    s_lshl_b32 s{S_T1}, s{S_T2}, 16
    s_add_u32 s{S_O2}, s{S_O2}, s{S_T1}
    s_lshl_b32 s{S_T1}, s{S_U}, 5
    s_add_u32 s{S_O2}, s{S_O2}, s{S_T1}
    s_add_u32 s{S_O2}, s{S_O2}, {AT}            ; y base
    s_lshl_b32 s{S_O3}, s{S_U}, 6
    s_add_u32 s{S_O3}, s{S_O3}, {GT}
    v_lshlrev_b32 v21, 2, v{vT16}
    buffer_load_dwordx2 v[170:171], v{vXo}, {XR}, s{S_O1} offen
    buffer_load_dword v172, v21, {WSR}, s{S_O3} offen sc1
    """)
    for r in range(4):
        a(f"s_add_u32 s{S_T1}, s{S_O2}, {4096*r}")
        a(f"buffer_load_ushort v{174+r}, v{vYo}, {WSR}, s{S_T1} offen sc1")
    a.label("OPJ_P1")
    a(f"""
    buffer_load_dword v21, v20, {WSR}, s{S_T0} offen sc1
    s_waitcnt vmcnt(0)
    v_readfirstlane_b32 s{S_T1}, v21
    s_cmp_ge_u32 s{S_T1}, 32
    s_cbranch_scc1 OPJ_P1OK
    s_sleep 4
    s_branch OPJ_P1
    """)
    a.label("OPJ_P1OK")
    a(f"""
    s_lshl_b32 s{S_T1}, s{S_U}, 17
    s_add_u32 s{S_T1}, s{S_T1}, {OX}
    """)
    for kap in range(32):
        a(f"buffer_load_dwordx4 v[{B+4*kap}:{B+4*kap+3}], v{vB}, {WSR}, s{S_T1} offen offset:{64*kap} sc1")
    for kap in range(32):
        a(f"s_waitcnt vmcnt({31-kap})")
        for c2 in range(2):
            d = vr(AC + 4 * c2, 4)
            a(f"v_mfma_f32_16x16x32_bf16 {d}, a[{8*kap+4*c2}:{8*kap+4*c2+3}], v[{B+4*kap}:{B+4*kap+3}], {'0' if kap == 0 else d}")
    a(f"""
    ds_write_b128 v{vRw}, v[{AC}:{AC+3}]
    ds_write_b128 v{vRw}, v[{AC+4}:{AC+7}] offset:16
    s_waitcnt lgkmcnt(0)
    s_barrier
    s_cmp_ge_u32 s{S_W}, 2
    s_cbranch_scc1 OPJ_NEXT
    s_lshl_b32 s{S_T1}, s{S_W}, 4
    v_add_u32 v21, s{S_T1}, v{vRr}
    ds_read_b128 v[32:35], v21
    ds_read_b128 v[36:39], v21 offset:2048
    ds_read_b128 v[40:43], v21 offset:4096
    ds_read_b128 v[44:47], v21 offset:6144
    s_waitcnt lgkmcnt(0)
    """)
    for r in range(4):
        a(f"v_add_f32 v{32+r}, v{32+r}, v{36+r}")
        a(f"v_add_f32 v{40+r}, v{40+r}, v{44+r}")
        a(f"v_add_f32 v{32+r}, v{32+r}, v{40+r}")
    def rnd2(x, y):
        a(f"v_cvt_pk_bf16_f32 v60, v{x}, v{y}")
        a(f"v_lshlrev_b32 v{x}, 16, v60")
        a(f"v_and_b32 v{y}, s{S_HIM}, v60")
    rnd2(32, 33); rnd2(34, 35)
    a(f"""
    v_lshlrev_b32 v36, 16, v170
    v_and_b32 v37, s{S_HIM}, v170
    v_lshlrev_b32 v38, 16, v171
    v_and_b32 v39, s{S_HIM}, v171
    s_cmp_eq_u32 s{S_W}, 0
    s_cselect_b64 vcc, -1, 0
    """)
    for r in range(4):
        a(f"v_cndmask_b32 v{40+r}, v{DSK+4+r}, v{DSK+r}, vcc")
    for r in range(4): a(f"v_mul_f32 v{36+r}, v{36+r}, v{40+r}")
    rnd2(36, 37); rnd2(38, 39)
    for r in range(4):
        a(f"v_lshlrev_b32 v{174+r}, 16, v{174+r}")
        a(f"v_add_f32 v{36+r}, v{36+r}, v{174+r}")
    rnd2(36, 37); rnd2(38, 39)
    a(f"""
    v_sub_f32 v44, 1.0, v172
    v_cvt_pk_bf16_f32 v60, v44, v44
    v_lshlrev_b32 v44, 16, v60
    """)
    for r in range(4):
        a(f"v_mul_f32 v{36+r}, v172, v{36+r}")
        a(f"v_mul_f32 v{32+r}, v44, v{32+r}")
    rnd2(36, 37); rnd2(38, 39); rnd2(32, 33); rnd2(34, 35)
    for r in range(4): a(f"v_add_f32 v{32+r}, v{32+r}, v{36+r}")
    a(f"""
    v_cvt_pk_bf16_f32 v40, v32, v33
    v_cvt_pk_bf16_f32 v41, v34, v35
    buffer_store_dwordx2 v[40:41], v{vXo}, {OUTR}, s{S_O1} offen
    """)
    a.label("OPJ_NEXT")
    a(f"""
    s_barrier
    s_add_u32 s{S_U}, s{S_U}, {NSET}
    s_branch OPJ_TASK
    """)
    a.label("OPJ_DONE")
    rt(a, 7)
    a("s_endpgm")

def gen_gate(a):
    WSR = f"s[{S_WS}:{S_WS+3}]"; XR = f"s[{S_X}:{S_X+3}]"
    GW = 52
    a.label("GATE")
    a(f"""
    s_cmp_lt_u32 s{S_RANK}, 64
    s_cbranch_scc1 GATE_DONE
    s_cmp_ge_u32 s{S_RANK}, 80
    s_cbranch_scc1 GATE_DONE
    s_load_dwordx2 s[{GW}:{GW+1}], s[0:1], 128
    v_and_b32 v1, 63, v0
    v_and_b32 v2, 7, v1
    v_lshlrev_b32 v2, 4, v2                  ; p*16
    v_lshrrev_b32 v3, 3, v1
    v_mul_u32_u24 v4, 1152, v3
    v_add_u32 v4, v4, v2                     ; x voff
    v_lshlrev_b32 v5, 2, v3
    v_and_b32 v6, 7, v1
    v_lshl_add_u32 v5, v6, 28, v5
    s_sub_u32 s{S_T0}, s{S_RANK}, 64
    s_lshl_b32 s{S_T0}, s{S_T0}, 2
    s_add_u32 s{S_T0}, s{S_T0}, s{S_W}
    s_lshl_b32 s{S_T0}, s{S_T0}, 5           ; row0
    s_mul_i32 s{S_T1}, s{S_T0}, 1152
    s_lshl_b32 s{S_T2}, s{S_T0}, 2
    s_add_u32 s{S_T2}, s{S_T2}, {GT}
    s_mov_b32 s{S_HIM}, 0xffff0000
    s_mov_b32 s{S_L2E}, 0xbfb8aa3b
    s_waitcnt lgkmcnt(0)
    s_and_b32 s{GW+1}, s{GW+1}, 0xffff
    s_mov_b32 s{GW+2}, 1152
    s_mov_b32 s{GW+3}, 0x00020000
    """)
    for k in range(9): a(f"buffer_load_dwordx4 v[{16+4*k}:{19+4*k}], v2, s[{GW}:{GW+3}], 0 offen offset:{128*k}")
    a("s_waitcnt vmcnt(0)")
    for k in range(36):
        a(f"v_lshlrev_b32 v{64+2*k}, 16, v{16+k}")
        a(f"v_and_b32 v{65+2*k}, s{S_HIM}, v{16+k}")
    a(f"s_mov_b32 s{S_T3}, 0")
    a.label("GATE_LOOP")
    for k in range(9): a(f"buffer_load_dwordx4 v[{16+4*k}:{19+4*k}], v4, {XR}, s{S_T1} offen offset:{128*k}")
    a("v_mov_b32 v8, 0\nv_mov_b32 v9, 0\ns_waitcnt vmcnt(0)")
    for k in range(36):
        a(f"""
        v_lshlrev_b32 v10, 16, v{16+k}
        v_and_b32 v11, s{S_HIM}, v{16+k}
        v_mul_f32 v10, v10, v{64+2*k}
        v_mul_f32 v11, v11, v{65+2*k}
        v_cvt_pk_bf16_f32 v12, v10, v11
        v_lshlrev_b32 v10, 16, v12
        v_and_b32 v11, s{S_HIM}, v12
        v_add_f32 v8, v8, v10
        v_add_f32 v9, v9, v11
        """)
    a(f"""
    v_add_f32 v8, v8, v9
    v_add_f32_dpp v8, v8, v8 quad_perm:[1,0,3,2] row_mask:0xf bank_mask:0xf
    v_add_f32_dpp v8, v8, v8 quad_perm:[2,3,0,1] row_mask:0xf bank_mask:0xf
    v_add_f32_dpp v8, v8, v8 row_half_mirror row_mask:0xf bank_mask:0xf
    v_cvt_pk_bf16_f32 v8, v8, v8
    v_lshlrev_b32 v8, 16, v8
    v_mul_f32 v8, s{S_L2E}, v8
    v_exp_f32 v8, v8
    v_add_f32 v8, 1.0, v8
    v_rcp_f32 v8, v8
    v_cvt_pk_bf16_f32 v8, v8, v8
    v_lshlrev_b32 v8, 16, v8
    buffer_store_dword v8, v5, {WSR}, s{S_T2} offen sc1
    s_add_u32 s{S_T1}, s{S_T1}, {8*1152}
    s_add_u32 s{S_T2}, s{S_T2}, 32
    s_add_u32 s{S_T3}, s{S_T3}, 1
    s_cmp_lt_u32 s{S_T3}, 4
    s_cbranch_scc1 GATE_LOOP
    s_waitcnt vmcnt(0)
    v_mov_b32 v8, 1
    v_mov_b32 v9, {FLG+F_G}
    s_mov_b64 exec, 1
    buffer_atomic_add v8, v9, {WSR}, 0 offen
    s_mov_b64 exec, -1
    """)
    a.label("GATE_DONE")
```

```python
from asmlib import *
from layout import *

class Q:
    def __init__(self, a, name, maxc):
        self.a = a; self.name = name; self.maxc = maxc; self.q = []
    def issue(self, tag):
        self.q.append(tag)
    def wait(self, tag):
        if tag not in self.q: return
        idx = max(i for i, t in enumerate(self.q) if t == tag)
        n = len(self.q) - 1 - idx
        assert n <= self.maxc, (self.name, tag, n)
        self.a(f"s_waitcnt {self.name}({n})")
        self.q = self.q[idx + 1:]
    def wait_all(self):
        self.a(f"s_waitcnt {self.name}(0)")
        self.q = []
    def has(self, tag):
        return tag in self.q

S_WS = 4; S_DBG = 8; S_A = 12; S_B = 16; S_C = 20; S_D = 24; S_OUT = 28
S_W = 32
S_H = 33
S_STEP = 34
S_T0 = 35; S_T1 = 36; S_T2 = 37; S_T3 = 38
S_MHG = 40
S_CEXP = 50
S_KXO = 52; S_VXO = 53; S_KMO = 54; S_VMO = 55; S_PWO = 56; S_RDO = 57; S_MEMW = 58; S_MEMR = 59
S_JOB = 60; S_FKM = 61; S_KXO2 = 62; S_MEMR3 = 63
S_PW1 = 42; S_PW4 = 45; S_JA = 43; S_JD = 44; S_JC = 46
OOB = 0x7ff00000
W1_DELAY = 0

def frag_regs():
    loc = {}
    regs = [ar(8 * i, 8) for i in range(32)] + [vr(80 + 8 * i, 8) for i in range(22)]
    ri = 0; m = 0
    order = [(T, kk) for kk in range(6) for T in range(6)]
    order += [(T, kk) for kk in range(6, 9) for T in range(4)]
    order += [(T, kk) for kk in range(6, 9) for T in (4, 5)]
    for n, (T, kk) in enumerate(order):
        if n % 3 == 0:
            loc[(1, T, kk)] = ("lds", m); m += 1
        else:
            loc[(1, T, kk)] = ("reg", regs[ri]); ri += 1
    for U in range(9):
        for ks in range(2):
            loc[(3, U, ks)] = ("reg", regs[ri]); ri += 1
    assert m == 18 and ri == 54
    return loc, order

def sub(reg8):
    k = reg8[0]; lo = int(reg8[2:reg8.index(":")])
    return k, lo

def rng(k, lo, n):
    return f"{k}[{lo}:{lo+n-1}]" if n > 1 else f"{k}{lo}"

def gen_team(a, dbg_time=False):
    loc, order = frag_regs()
    vIDX, vWl, vSh, vZw, vZr, vSw, vSrX, vSr0, vOr, vLane, vPW, vKX = range(12)
    vZero = vIDX
    AB = [12, 16, 20]
    ACC = [24, 28, 32, 36, 40, 44]
    WB = [48, 56]
    KXR = 64; VXR = 72
    WSR = f"s[{S_WS}:{S_WS+3}]"
    lg = Q(a, "lgkmcnt", 15); vm = Q(a, "vmcnt", 63)
    def stamp(i):
        if dbg_time: a(f"s_memtime s[{66+2*i}:{67+2*i}]")

    a.label("TEAM")
    stamp(10)
    a(f"v_and_b32 v{vLane}, 63, v0")
    a(f"v_mov_b32 v79, v0")
    L = f"v{vLane}"
    a(f"""
    v_and_b32 v12, 15, {L}            ; i
    v_lshrrev_b32 v13, 4, {L}         ; g
    v_and_b32 v14, 7, {L}             ; i&7
    v_bfe_u32 v15, {L}, 3, 1          ; i>>3
    v_lshrrev_b32 v16, 5, {L}         ; lane>>5 = g>>1
    v_and_b32 v17, 1, v13             ; g&1
    v_and_b32 v22, 1, {L}             ; hf = i&1
    v_lshrrev_b32 v23, 1, v12         ; t = i>>1
    s_mul_i32 s{S_T0}, s{S_W}, {L_REG}
    s_add_u32 s{S_T0}, s{S_T0}, {L_SC}        ; scratch region of this wave
    v_mov_b32 v18, 0x00104444
    v_mov_b32 v19, 0x0010eeee
    v_cmp_lt_u32 vcc, 0, v22
    v_cndmask_b32 v{vIDX}, v18, v19, vcc
    s_mul_i32 s{S_T1}, s{S_W}, 36864
    v_lshlrev_b32 v18, 4, {L}
    v_add_u32 v{vWl}, s{S_T1}, v18
    v_lshlrev_b32 v20, 8, v13
    v_lshl_add_u32 v20, v22, 7, v20
    v_lshl_add_u32 v20, v23, 4, v20
    v_add_u32 v{vSh}, {L_SH}, v20
    ; vZw = region + n*32 + g*4
    v_lshlrev_b32 v20, 5, v12
    v_lshl_add_u32 v20, v13, 2, v20
    v_add_u32 v{vZw}, s{S_T0}, v20
    v_bfe_u32 v20, {L}, 2, 2          ; r
    v_lshl_add_u32 v20, v13, 3, v20   ; 8g+r
    v_lshlrev_b32 v20, 5, v20
    v_and_b32 v21, 3, {L}
    v_lshl_add_u32 v20, v21, 3, v20
    v_add_u32 v{vZr}, s{S_T0}, v20
    v_lshl_add_u32 v20, v13, 3, v14   ; g*8+(i&7)
    v_lshlrev_b32 v20, 4, v20
    v_add_u32 v21, s{S_T0}, v20
    v_mov_b32 v19, 0x40000
    v_cmp_lt_u32 vcc, 0, v15          ; i>=8
    v_cndmask_b32 v{vSw}, v19, v21, vcc
    v_mov_b32 v19, 1280
    v_mov_b32 v21, 768
    v_cndmask_b32 v19, v19, v21, vcc
    v_add3_u32 v{vSrX}, v20, v19, 0
    v_add_u32 v{vSrX}, {L_SC}, v{vSrX}
    v_lshl_add_u32 v20, v16, 3, v14
    v_lshlrev_b32 v20, 4, v20
    v_lshl_add_u32 v20, v17, 3, v20
    v_add_u32 v{vSr0}, {L_SC}, v20
    v_lshl_add_u32 v20, v17, 1, v22
    v_lshl_add_u32 v20, v20, 3, v23
    v_lshlrev_b32 v20, 4, v20
    v_mul_u32_u24 v21, {L_REG}, v16
    v_add3_u32 v{vOr}, v20, v21, 0
    v_add_u32 v{vOr}, {L_SC+256}, v{vOr}
    ; vPW = (18w + (n>>1))*4096 + ((n&1)*4+g)*16
    s_mul_i32 s{S_T1}, s{S_W}, 18
    v_add_u32 v20, s{S_T1}, v23
    v_lshlrev_b32 v20, 12, v20
    v_lshl_add_u32 v21, v22, 2, v13
    v_lshl_add_u32 v{vPW}, v21, 4, v20
    ; vKX = i*256 + w*64 + g*16
    v_lshlrev_b32 v20, 8, v12
    v_lshl_add_u32 v20, v13, 4, v20
    s_lshl_b32 s{S_T1}, s{S_W}, 6
    v_add_u32 v{vKX}, s{S_T1}, v20
    s_mov_b32 s{S_MHG}, 0x00f000f0
    s_mov_b32 s{S_MHG+1}, 0x00f000f0
    s_mov_b32 s{S_CEXP}, 0x3e0293ee
    """)
    a(f"""
    v_mov_b32 v24, -1
    v_mov_b32 v25, -1
    v_mov_b32 v26, -1
    v_mov_b32 v27, -1
    v_lshlrev_b32 v28, 4, v79
    s_mul_i32 s{S_T1}, s{S_H}, 18432
    s_add_u32 s{S_T1}, s{S_T1}, {PART}
    """)
    for u in range(4):
        a(f"buffer_store_dwordx4 v[24:27], v28, {WSR}, s{S_T1} offen")
        a(f"s_add_u32 s{S_T1}, s{S_T1}, 4096")
    a(f"""
    v_cmp_gt_u32 vcc, 128, v79
    s_mov_b64 exec, vcc
    buffer_store_dwordx4 v[24:27], v28, {WSR}, s{S_T1} offen
    s_mov_b64 exec, -1
    s_mul_i32 s{S_T1}, s{S_H}, 18720
    s_add_u32 s{S_T1}, s{S_T1}, {MEM}
    """)
    for u in range(4):
        a(f"buffer_store_dwordx4 v[24:27], v28, {WSR}, s{S_T1} offen")
        a(f"s_add_u32 s{S_T1}, s{S_T1}, 4096")
    a(f"""
    v_cmp_gt_u32 vcc, 146, v79
    s_mov_b64 exec, vcc
    buffer_store_dwordx4 v[24:27], v28, {WSR}, s{S_T1} offen
    s_mov_b64 exec, -1
    """)
    a(f"""
    v_lshrrev_b32 v24, 4, v79         ; rho0
    v_and_b32 v25, 15, v79            ; cc
    v_and_b32 v26, 7, v24
    v_bfe_u32 v27, v24, 3, 1
    v_lshlrev_b32 v27, 1, v27
    v_xor_b32 v26, v26, v27           ; key1
    v_lshlrev_b32 v26, 1, v26
    v_xor_b32 v26, v25, v26           ; pos
    v_lshlrev_b32 v26, 4, v26
    v_lshl_add_u32 v26, v24, 8, v26
    v_add_u32 v28, {L_SH}, v26
    v_and_b32 v27, 1, v24
    v_bfe_u32 v26, v24, 2, 1
    v_lshl_add_u32 v27, v26, 1, v27
    v_lshlrev_b32 v27, 1, v27
    v_xor_b32 v26, v25, v27
    v_lshlrev_b32 v26, 4, v26
    v_lshl_add_u32 v26, v24, 8, v26
    v_add_u32 v29, {L_SH}, v26
    v_xor_b32 v30, 128, v29           ; u odd
    v_and_b32 v26, 12, v25
    v_bfe_u32 v31, v25, 1, 1
    v_or_b32 v26, v26, v31
    v_xor_b32 v26, v26, v27
    v_lshlrev_b32 v26, 4, v26
    v_and_b32 v31, 1, v25
    v_lshl_add_u32 v26, v31, 3, v26
    v_lshl_add_u32 v26, v24, 8, v26
    v_add_u32 v18, {L_SH}, v26
    v_xor_b32 v19, 32, v18
    v_xor_b32 v20, 128, v18
    v_xor_b32 v21, 160, v18
    v_lshlrev_b32 v31, 13, v24
    v_lshl_add_u32 v31, v25, 4, v31
    v_mul_u32_u24 v26, 1152, v24
    v_lshrrev_b32 v27, 2, v25
    v_mul_u32_u24 v27, 288, v27
    v_and_b32 v25, 3, v25
    v_lshl_add_u32 v27, v25, 4, v27
    v_add_u32 v79, v26, v27
    """)
    a(f"""
    v_bfe_u32 v32, {L}, 2, 2          ; r
    v_and_b32 v33, 3, {L}             ; c
    v_lshrrev_b32 v34, 1, v32         ; r>>1
    v_and_b32 v35, 1, v32             ; r&1
    v_lshrrev_b32 v36, 1, v13         ; gb>>1
    s_lshl_b32 s{S_T1}, s{S_W}, 2     ; 4w
    """)
    RA1 = [40, 41, 42, 43]
    RA3 = [44, 45, 46, 47]
    for mp in range(2):
        a(f"""
        v_lshl_add_u32 v37, v17, 2, v35       ; 4*(gb&1) + (r&1)
        v_add_u32 v37, {2*mp}, v37            ; 2j + (r&1)
        v_lshl_add_u32 v38, v34, 3, v37       ; rho15
        v_lshl_add_u32 v38, v36, 4, v38       ; + 16*(gb>>1)
        v_lshlrev_b32 v39, 1, v34
        v_xor_b32 v37, v37, v39               ; key
        v_lshlrev_b32 v37, 1, v37
        v_lshrrev_b32 v39, 1, v33
        v_add_u32 v39, s{S_T1}, v39           ; 4w + (c>>1)
        v_xor_b32 v37, v37, v39
        v_lshlrev_b32 v37, 4, v37
        v_lshl_add_u32 v37, v38, 8, v37
        v_and_b32 v39, 1, v33
        v_lshl_add_u32 v37, v39, 3, v37
        v_add_u32 v{RA1[2*mp]}, {L_SH}, v37
        v_xor_b32 v{RA1[2*mp+1]}, 32, v{RA1[2*mp]}
        """)
        a(f"""
        v_lshl_add_u32 v38, v17, 4, v35
        v_lshl_add_u32 v38, v36, 3, v38
        v_lshl_add_u32 v38, v34, 2, v38
        v_add_u32 v38, {2*mp}, v38
        v_lshl_add_u32 v37, v34, 1, v35
        v_lshl_add_u32 v37, v17, 2, v37       ; key
        v_lshlrev_b32 v37, 1, v37
        v_lshrrev_b32 v39, 1, v33
        v_add_u32 v39, s{S_T1}, v39
        v_xor_b32 v37, v37, v39
        v_lshlrev_b32 v37, 4, v37
        v_lshl_add_u32 v37, v38, 8, v37
        v_and_b32 v39, 1, v33
        v_lshl_add_u32 v37, v39, 3, v37
        v_add_u32 v{RA3[2*mp]}, {L_SH}, v37
        v_xor_b32 v{RA3[2*mp+1]}, 32, v{RA3[2*mp]}
        """)
    a(f"""
    v_mov_b32 v39, v79
    v_mov_b32 v32, v18
    v_mov_b32 v33, v19
    v_mov_b32 v34, v20
    v_mov_b32 v35, v21
    s_mov_b32 s{S_T2}, 0x05040100
    s_mov_b32 s{S_T3}, 0x07060302
    """)
    stages = []
    for mat in range(3):
        for kk in range(9):
            stages.append((1, mat, kk))
    for ks in range(2):
        for up in range(5):
            stages.append((3, ks, up))
    LB = [48, 64]
    TMPF = 12
    SRDS = [S_A, S_B, S_C]
    def issue_loads(n):
        kind, x, y = stages[n]
        b = LB[n % 2]
        if kind == 1:
            a(f"s_lshl_b32 s{S_T1}, s{S_H}, 8")
            a(f"s_add_u32 s{S_T1}, s{S_T1}, {y*64*8192}")
            for u in range(4):
                a(f"buffer_load_dwordx4 v[{b+4*u}:{b+4*u+3}], v31, s[{SRDS[x]}:{SRDS[x]+3}], s{S_T1} offen")
                vm.issue(("ld", n))
                if u < 3: a(f"s_add_u32 s{S_T1}, s{S_T1}, {16*8192}")
        else:
            a(f"s_mul_i32 s{S_T1}, s{S_H}, 147456")
            a(f"s_add_u32 s{S_T1}, s{S_T1}, {x*64*1152 + y*64}")
            for u in range(4):
                a(f"buffer_load_dwordx4 v[{b+4*u}:{b+4*u+3}], v39, s[{S_D}:{S_D+3}], s{S_T1} offen")
                vm.issue(("ld", n))
                if u < 3: a(f"s_add_u32 s{S_T1}, s{S_T1}, {16*1152}")
    vm.q = []
    issue_loads(0); issue_loads(1)
    for n, (kind, x, y) in enumerate(stages):
        b = LB[n % 2]
        vm.wait(("ld", n))
        for u in range(4):
            d = b + 4 * u
            if kind == 3 and y < 4:
                a(f"""
                v_perm_b32 v12, v{d+1}, v{d}, s{S_T2}
                v_perm_b32 v13, v{d+3}, v{d+2}, s{S_T2}
                v_perm_b32 v14, v{d+1}, v{d}, s{S_T3}
                v_perm_b32 v15, v{d+3}, v{d+2}, s{S_T3}
                ds_write_b64 v{32 + 2*(u%2)}, v[12:13] offset:{4096*u}
                ds_write_b64 v{33 + 2*(u%2)}, v[14:15] offset:{4096*u}
                """)
            else:
                wa = 28 if kind == 1 else (29 if u % 2 == 0 else 30)
                a(f"ds_write_b128 v{wa}, v[{d}:{d+3}] offset:{4096*u}")
        a("s_waitcnt lgkmcnt(0)")
        a("s_barrier")
        if n + 2 < len(stages): issue_loads(n + 2)
        RA = RA1 if kind == 1 else RA3
        ntiles = 2 if not (kind == 3 and y == 4) else 1
        wb = []
        for nt in range(ntiles):
            key = (1, 2 * x + nt, y) if kind == 1 else (3, 2 * y + nt, x)
            where, what = loc[key]
            if where == "reg":
                k, lo = sub(what)
            else:
                k, lo = "v", TMPF + 8 * nt
                wb.append((what, lo))
            for hb in range(2):
                for mp in range(2):
                    a(f"ds_read_b64_tr_b16 {rng(k, lo + 4*hb + 2*mp, 2)}, v{RA[2*mp+nt]} offset:{8192*hb}")
        a("s_waitcnt lgkmcnt(0)")
        for (m, lo) in wb:
            a(f"ds_write_b128 v{vWl}, v[{lo}:{lo+3}] offset:{2048*m}")
            a(f"ds_write_b128 v{vWl}, v[{lo+4}:{lo+7}] offset:{2048*m+1024}")
        a("s_barrier")
    stamp(11)
    a(f"""
    v_and_b32 v12, 7, {L}
    v_mul_u32_u24 v12, 1152, v12
    v_lshrrev_b32 v13, 3, {L}
    v_lshl_add_u32 v12, v13, 4, v12    ; t*1152 + (lane>>3)*16
    s_lshl_b32 s{S_T1}, s{S_W}, 8
    s_lshl_b32 s{S_T2}, s{S_W}, 11
    v_lshlrev_b32 v14, 4, {L}
    v_add_u32 v14, {L_SH}, v14
    v_add_u32 v13, s{S_T2}, v14
    s_load_dwordx2 s[{S_A}:{S_A+1}], s[0:1], 80
    s_waitcnt lgkmcnt(0)
    s_and_b32 s{S_A+1}, s{S_A+1}, 0xffff
    s_mov_b32 s{S_A+2}, 9216
    s_mov_b32 s{S_A+3}, 0x00020000
    buffer_load_dwordx4 v[16:19], v12, s[{S_A}:{S_A+3}], s{S_T1} offen
    buffer_load_dwordx4 v[20:23], v12, s[{S_A}:{S_A+3}], s{S_T1} offen offset:128
    buffer_load_dwordx4 v[24:27], v12, s[{S_A}:{S_A+3}], 0 offen offset:1024
    s_waitcnt vmcnt(0)
    ds_write_b128 v13, v[16:19]
    ds_write_b128 v13, v[20:23] offset:1024
    ds_write_b128 v14, v[24:27] offset:8192
    """)
    vm.q = []
    a(f"""
    s_waitcnt lgkmcnt(0)
    s_barrier
    s_cmp_lg_u32 s{S_W}, 0
    s_cbranch_scc1 TEAM_BAR_DONE
    v_mov_b32 v12, 1
    v_mov_b32 v13, {D_TEAMBAR*4}
    s_mov_b64 exec, 1
    buffer_atomic_add v12, v13, s[{S_DBG}:{S_DBG+3}], 0 offen
    """)
    a.label("TEAM_BAR_POLL")
    a(f"""
    buffer_load_dword v14, v13, s[{S_DBG}:{S_DBG+3}], 0 offen sc1
    s_waitcnt vmcnt(0)
    v_readfirstlane_b32 s{S_T1}, v14
    s_cmp_lt_u32 s{S_T1}, 32
    s_cbranch_scc1 TEAM_BAR_POLL
    """)
    a(f"v_mov_b32 v13, {FLG+F_KV}")
    a.label("TEAM_KV0_POLL")
    a(f"""
    buffer_load_dword v14, v13, {WSR}, 0 offen sc1
    s_waitcnt vmcnt(0)
    v_readfirstlane_b32 s{S_T1}, v14
    s_lshr_b32 s{S_T1}, s{S_T1}, s{S_H}
    s_bitcmp1_b32 s{S_T1}, 0
    s_cbranch_scc0 TEAM_KV0_POLL
    s_mov_b64 exec, -1
    """)
    a.label("TEAM_BAR_DONE")
    a("s_barrier")
    a(f"""
    s_mov_b32 s{S_STEP}, 0
    s_lshl_b32 s{S_T1}, s{S_H}, 13
    s_add_u32 s{S_KXO}, s{S_T1}, {KX}
    s_add_u32 s{S_KXO2}, s{S_KXO}, 4096
    s_add_u32 s{S_VXO}, s{S_T1}, {VX}
    s_lshl_b32 s{S_T1}, s{S_H}, 12
    s_add_u32 s{S_KMO}, s{S_T1}, {KM}
    s_lshl_b32 s{S_T1}, s{S_H}, 11
    s_add_u32 s{S_VMO}, s{S_T1}, {VM}
    s_lshl_b32 s{S_T1}, s{S_H}, 7
    s_add_u32 s{S_PWO}, s{S_T1}, {PART}
    s_add_u32 s{S_PW1}, s{S_PWO}, 32768
    s_mul_i32 s{S_T1}, s{S_W}, {18*4096}
    s_add_u32 s{S_PW4}, s{S_PWO}, 65536
    s_add_u32 s{S_PW4}, s{S_PW4}, s{S_T1}
    s_mov_b32 s96, 0
    s_mov_b32 s97, 0
    s_lshl_b32 s{S_JOB}, s{S_W}, 5
    s_add_u32 s{S_JOB}, s{S_JOB}, s{S_H}
    s_lshl_b32 s{S_T1}, s{S_JOB}, 12
    s_add_u32 s{S_RDO}, s{S_T1}, {PART}
    ; job decode: wj = J/18, jj = J%18 ; colbase = 144wj + (jj<16 ? 64*(jj>>3)+4*(jj&7) : 128+8*(jj-16)); astep = jj<16?2:4 ; delta = jj<16?32:2
    s_mul_i32 s{S_T1}, s{S_JOB}, 3641
    s_lshr_b32 s{S_T1}, s{S_T1}, 16          ; J/18 for J<128
    s_mul_i32 s{S_T2}, s{S_T1}, 18
    s_sub_u32 s{S_T2}, s{S_JOB}, s{S_T2}     ; jj
    s_mul_i32 s{S_T1}, s{S_T1}, 144
    s_lshr_b32 s{S_T3}, s{S_T2}, 3
    s_lshl_b32 s{S_T3}, s{S_T3}, 6
    s_and_b32 s{S_T0}, s{S_T2}, 7
    s_lshl_b32 s{S_JA}, s{S_T0}, 2
    s_lshl_b32 s{S_JD}, s{S_T0}, 3
    s_cmp_lt_u32 s{S_T2}, 16
    s_cselect_b32 s{S_T0}, s{S_JA}, s{S_JD}
    s_cselect_b32 s{S_JA}, 2, 4
    s_cselect_b32 s{S_JD}, 32, 2
    s_add_u32 s{S_T1}, s{S_T1}, s{S_T3}
    s_add_u32 s{S_JC}, s{S_T1}, s{S_T0}
    s_mov_b32 s{S_MEMW}, {MEM+9216}
    s_lshl_b32 s{S_T1}, s{S_W}, 11
    s_add_u32 s{S_MEMR}, s{S_T1}, {MEM+9216}
    s_lshl_b32 s{S_T1}, s{S_W}, 8
    s_add_u32 s{S_MEMR3}, s{S_T1}, {MEM+9216+8192}
    s_lshl_b32 s{S_T1}, s{S_H}, 4
    s_lshl_b32 s{S_T2}, s{S_W}, 2
    s_add_u32 s{S_FKM}, s{S_T1}, s{S_T2}
    s_add_u32 s{S_FKM}, s{S_FKM}, {FLG+F_KM}
    """)
    def vx_addr(dst):
        a(f"""
        v_bfe_u32 v{dst}, v{vWl}, 4, 4
        v_lshl_add_u32 v{dst}, s{S_W}, 5, v{dst}
        v_lshlrev_b32 v{dst}, 6, v{dst}
        v_bfe_u32 v{dst+1}, v{vWl}, 8, 2
        v_lshl_add_u32 v{dst}, v{dst+1}, 4, v{dst}
        """)
    def kx_load():
        a(f"buffer_load_dwordx4 v[{KXR}:{KXR+3}], v{vKX}, {WSR}, s{S_KXO} offen")
        a(f"buffer_load_dwordx4 v[{KXR+4}:{KXR+7}], v{vKX}, {WSR}, s{S_KXO2} offen")
    def vx_load(ad):
        a(f"buffer_load_dwordx4 v[{VXR}:{VXR+3}], v{ad}, {WSR}, s{S_VXO} offen")
        a(f"buffer_load_dwordx4 v[{VXR+4}:{VXR+7}], v{ad}, {WSR}, s{S_VXO} offen offset:1024")
    def zero4(r):
        a(f"ds_read_b128 v[{r}:{r+3}], v{vIDX} offset:0" if False else f"ds_read_b128 v[{r}:{r+3}], v{vZero}")
        lg.issue("zero")
    kx_load(); vx_addr(12); vx_load(12)
    a(f"""
    s_add_u32 s{S_KXO}, s{S_KXO}, {32*8192}
    s_add_u32 s{S_KXO2}, s{S_KXO2}, {32*8192}
    s_add_u32 s{S_VXO}, s{S_VXO}, {32*8192}
    """)
    for r in range(24): a(f"v_mov_b32 v{ACC[0]+r}, 0")
    a("s_waitcnt vmcnt(0)")

    def w_read(m):
        b = WB[m % 2]
        a(f"ds_read_b128 v[{b}:{b+3}], v{vWl} offset:{2048*m}"); lg.issue(("w", m))
        a(f"ds_read_b128 v[{b+4}:{b+7}], v{vWl} offset:{2048*m+1024}"); lg.issue(("w", m))
    def a_read(kk):
        b = AB[kk % 3]
        a(f"ds_read_b128 v[{b}:{b+3}], v{vSh} offset:{1024*kk}"); lg.issue(("a", kk))
    w_read(0); w_read(1)
    a("s_waitcnt lgkmcnt(0)")

    a.label("TEAM_STEP")
    lg.q = []
    stamp(0)
    a_read(0); a_read(1); a_read(2)
    def smf(T, kk):
        where, what = loc[(1, T, kk)]
        ab = AB[kk % 3]
        need = [t for t in (("a", kk), ("w", what) if where == "lds" else None) if t and lg.has(t)]
        if need:
            last = max(need, key=lambda t: max(i for i, x in enumerate(lg.q) if x == t))
            lg.wait(last)
        b = vr(WB[what % 2], 8) if where == "lds" else what
        a(f"v_smfmac_f32_16x16x64_bf16 v[{ACC[T]}:{ACC[T]+3}], v[{ab}:{ab+3}], {b}, v{vIDX}")
        if where == "lds" and what + 2 < 18:
            w_read(what + 2)
    for n, (T, kk) in enumerate(order[:48]):
        smf(T, kk)
        if kk < 6 and T == 5: a_read(kk + 3)
    stamp(1)
    q0, q1, k0, k1 = ACC[0:4]
    side = []
    S = side.append
    for (qq, kq, off) in ((q0, k0, 0), (q1, k1, 128)):
        S(f"v_add_f32 v{qq}, v{qq}, v{qq+1}")
        S(f"v_add_f32 v{qq+2}, v{qq+2}, v{qq+3}")
        S(f"v_cvt_pk_bf16_f32 v{qq}, v{qq}, v{qq+2}")
        S(f"v_add_f32 v{kq}, v{kq}, v{kq+1}")
        S(f"v_add_f32 v{kq+2}, v{kq+2}, v{kq+3}")
        S(f"v_cvt_pk_bf16_f32 v{kq}, v{kq}, v{kq+2}")
        S(("ds", f"ds_write2_b32 v{vZw}, v{kq}, v{qq} offset0:{off} offset1:{off+4}", "zw"))
    Z = q1
    S(("ds", f"ds_read_b64_tr_b16 v[{Z}:{Z+1}], v{vZr}", "z"))
    S(("ds", f"ds_read_b64_tr_b16 v[{Z+2}:{Z+3}], v{vZr} offset:128", "z"))
    def emit_side(n):
        k = 0
        while side and k < n:
            it = side.pop(0)
            if isinstance(it, str): a(it)
            elif it[0] == "ds": a(it[1]); lg.issue(it[2])
            k += 1
    cnt = [0, 2, 4, 5, 5, 0]
    for n, (T, kk) in enumerate(order[48:]):
        smf(T, kk)
        emit_side(cnt[n])
    emit_side(1000)
    v0_, v1_ = ACC[4], ACC[5]
    VMB = 48
    T0, T1, T2 = q0, k0, k1
    vx_addr(60)
    a(f"""
    v_lshrrev_b32 v61, 2, v60
    v_mov_b32 v{VMB+1}, 0
    v_mov_b32 v{VMB+3}, 0
    """)
    lg.wait("z")
    a(f"""
    v_mfma_f32_16x16x32_bf16 v[{T1}:{T1+3}], v[{KXR}:{KXR+3}], v[{Z}:{Z+3}], 0
    v_mfma_f32_16x16x32_bf16 v[{T2}:{T2+3}], v[{KXR+4}:{KXR+7}], v[{Z}:{Z+3}], 0
    v_mfma_f32_16x16x32_bf16 v[{T0}:{T0+3}], v[{Z}:{Z+3}], v[{Z}:{Z+3}], 0
    v_add_f32 v{v0_}, v{v0_}, v{v0_+1}
    v_add_f32 v{v0_+2}, v{v0_+2}, v{v0_+3}
    v_add_f32 v{v1_}, v{v1_}, v{v1_+1}
    v_add_f32 v{v1_+2}, v{v1_+2}, v{v1_+3}
    v_cvt_pk_bf16_f32 v{VMB}, v{v0_}, v{v0_+2}
    v_cvt_pk_bf16_f32 v{VMB+2}, v{v1_}, v{v1_+2}
    ds_write_b128 v{vSw}, v[{T1}:{T1+3}] offset:768
    ds_write_b128 v{vSw}, v[{T2}:{T2+3}] offset:1280
    ds_write_b128 v{vSw}, v[{T0}:{T0+3}]
    buffer_store_dwordx4 v[{Z}:{Z+3}], v{vKX}, {WSR}, s{S_KMO} offen sc1
    """)
    kx_load()
    stamp(2)
    lg.wait_all()
    a("s_barrier")
    stamp(3)
    X = 12; TZ = 28
    for w2 in range(4):
        a(f"ds_read_b128 v[{X+4*w2}:{X+4*w2+3}], v{vSrX} offset:{L_REG*w2}"); lg.issue(("x", w2))
        a(f"ds_read_b64 v[{TZ+2*w2}:{TZ+2*w2+1}], v{vSr0} offset:{L_REG*w2}"); lg.issue(("x", w2))
    A3 = [36, 40, 44, 12, 16, 20, 24, 48, 52]
    for U in range(3): zero4(A3[U])
    a(f"""
    buffer_store_dword v{VMB}, v61, {WSR}, s{S_VMO} offen sc1
    buffer_store_dword v{VMB+2}, v61, {WSR}, s{S_VMO} offen offset:256 sc1
    """)
    lg.wait(("x", 1))
    a(f"""
    v_pk_add_f32 v[{X}:{X+1}], v[{X}:{X+1}], v[{X+4}:{X+5}]
    v_pk_add_f32 v[{X+2}:{X+3}], v[{X+2}:{X+3}], v[{X+6}:{X+7}]
    v_pk_add_f32 v[{TZ}:{TZ+1}], v[{TZ}:{TZ+1}], v[{TZ+2}:{TZ+3}]
    """)
    lg.wait(("x", 3))
    a(f"""
    v_pk_add_f32 v[{X+8}:{X+9}], v[{X+8}:{X+9}], v[{X+12}:{X+13}]
    v_pk_add_f32 v[{X+10}:{X+11}], v[{X+10}:{X+11}], v[{X+14}:{X+15}]
    v_pk_add_f32 v[{TZ+4}:{TZ+5}], v[{TZ+4}:{TZ+5}], v[{TZ+6}:{TZ+7}]
    v_pk_add_f32 v[{X}:{X+1}], v[{X}:{X+1}], v[{X+8}:{X+9}]
    v_pk_add_f32 v[{X+2}:{X+3}], v[{X+2}:{X+3}], v[{X+10}:{X+11}]
    v_pk_add_f32 v[{X+4}:{X+5}], v[{TZ}:{TZ+1}], v[{TZ+4}:{TZ+5}]
    """)
    Mx = X + 6; Tm = X + 7
    PX = 28; PM = 32
    O = 52
    a(f"""
    v_max3_f32 v{Mx}, v{X}, v{X+1}, v{X+2}
    v_max3_f32 v{Tm}, v{X+3}, v{X+4}, v{X+5}
    v_max_f32 v{Mx}, v{Mx}, v{Tm}
    """)
    zero4(20); zero4(24)
    a(f"""
    v_max_f32_dpp v{Mx}, v{Mx}, v{Mx} row_ror:8 row_mask:0xf bank_mask:0xf
    v_mov_b32 v{Tm}, v{Mx}
    v_mov_b32 v{PM+1}, 0
    s_nop 0
    v_permlane16_swap_b32 v{Tm}, v{Mx}
    v_max_f32 v{Mx}, v{Mx}, v{Tm}
    v_mov_b32 v{Tm}, v{Mx}
    s_nop 1
    v_permlane32_swap_b32 v{Tm}, v{Mx}
    v_max_f32 v{Mx}, v{Mx}, v{Tm}
    v_mul_f32 v{Mx}, s{S_CEXP}, v{Mx}
    """)
    for r in range(6): a(f"v_fma_f32 v{X+r}, v{X+r}, s{S_CEXP}, -v{Mx}")
    for r in range(6): a(f"v_exp_f32 v{X+r}, v{X+r}")
    a(f"""
    v_cvt_pk_bf16_f32 v{PM}, v{X+4}, v{X+5}
    v_cvt_pk_bf16_f32 v{PX}, v{X}, v{X+1}
    v_cvt_pk_bf16_f32 v{PX+1}, v{X+2}, v{X+3}
    v_add_f32 v{Mx}, v{X+4}, v{X+5}
    v_mfma_f32_16x16x16_bf16 v[{O}:{O+3}], v[{VMB}:{VMB+1}], v[{PM}:{PM+1}], 0
    v_mov_b32_dpp v{PX+2}, v{PX} row_ror:8 row_mask:0xf bank_mask:0xf
    v_mov_b32_dpp v{PX+3}, v{PX+1} row_ror:8 row_mask:0xf bank_mask:0xf
    v_mfma_f32_16x16x16_bf16 v[{O+4}:{O+7}], v[{VMB+2}:{VMB+3}], v[{PM}:{PM+1}], 0
    v_add_f32 v{Tm}, v{X}, v{X+1}
    v_fma_f32 v{Mx}, v{Mx}, 0.5, v{Tm}
    v_add_f32 v{Tm}, v{X+2}, v{X+3}
    v_add_f32 v{Mx}, v{Mx}, v{Tm}
    v_mfma_f32_16x16x32_bf16 v[{O}:{O+3}], v[{VXR}:{VXR+3}], v[{PX}:{PX+3}], v[{O}:{O+3}]
    v_mfma_f32_16x16x32_bf16 v[{O+4}:{O+7}], v[{VXR+4}:{VXR+7}], v[{PX}:{PX+3}], v[{O+4}:{O+7}]
    v_add_f32_dpp v{Mx}, v{Mx}, v{Mx} row_ror:8 row_mask:0xf bank_mask:0xf
    v_mov_b32 v{Tm}, v{Mx}
    """)
    zero4(12); zero4(48)
    a(f"""
    v_permlane16_swap_b32 v{Tm}, v{Mx}
    v_add_f32 v{Mx}, v{Mx}, v{Tm}
    v_mov_b32 v{Tm}, v{Mx}
    """)
    vx_load(60)
    a(f"""
    v_permlane32_swap_b32 v{Tm}, v{Mx}
    v_add_f32 v{Mx}, v{Mx}, v{Tm}
    v_rcp_f32 v{Mx}, v{Mx}
    s_cmp_eq_u32 s{S_STEP}, 63
    v_mov_b32 v{Tm}, v{Mx}
    """)
    for p in range(4): a(f"v_pk_mul_f32 v[{O+2*p}:{O+2*p+1}], v[{O+2*p}:{O+2*p+1}], v[{Mx}:{Tm}]")
    OP = 60
    for p in range(4): a(f"v_cvt_pk_bf16_f32 v{OP+p}, v{O+2*p}, v{O+2*p+1}")
    a(f"ds_write_b128 v{vSw}, v[{OP}:{OP+3}] offset:256")
    zero4(16); zero4(52)
    stamp(4)
    a("s_waitcnt lgkmcnt(0)")
    a("s_barrier")
    stamp(5)
    AO = 56
    a(f"ds_read_b128 v[{AO}:{AO+3}], v{vOr}")
    a(f"ds_read_b128 v[{AO+4}:{AO+7}], v{vOr} offset:{2*L_REG}")
    a("s_cbranch_scc1 TEAM_LAST")
    a(f"""
    v_bfe_u32 v28, v{vWl}, 7, 1
    v_lshlrev_b32 v28, 12, v28
    v_bfe_u32 v29, v{vWl}, 6, 1
    v_lshl_add_u32 v28, v29, 6, v28
    v_bfe_u32 v29, v{vWl}, 8, 2
    v_lshl_add_u32 v28, v29, 4, v28
    v_bfe_u32 v29, v{vWl}, 5, 1
    v_lshl_add_u32 v28, v29, 3, v28
    v_bfe_u32 v29, v{vWl}, 4, 1
    v_lshl_add_u32 v28, v29, 30, v28
    """)
    a("s_waitcnt lgkmcnt(0)" if dbg_time else "s_waitcnt lgkmcnt(1)")
    PWS = [S_PWO, S_PW1]
    OUT = [32, 36]
    def pair_out(pp):
        Ua, Ub = A3[2 * pp], A3[2 * pp + 1]
        o = (32 if pp < 2 else 40) + 2 * (pp % 2)
        r = [f"v_add_f32 v{Ua}, v{Ua}, v{Ua+1}",
             f"v_add_f32 v{Ua+2}, v{Ua+2}, v{Ua+3}",
             f"v_add_f32 v{Ub}, v{Ub}, v{Ub+1}",
             f"v_add_f32 v{Ub+2}, v{Ub+2}, v{Ub+3}",
             f"v_cvt_pk_bf16_f32 v{o}, v{Ua}, v{Ub}",
             f"v_cvt_pk_bf16_f32 v{o+1}, v{Ua+2}, v{Ub+2}"]
        if pp % 2 == 1:
            r.append(f"buffer_store_dwordx4 v[{o-2}:{o+1}], v{vPW}, {WSR}, s{PWS[pp//2]} offen")
        return r
    pend = []
    first = True
    for U in range(9):
        a(f"v_smfmac_f32_16x16x64_bf16 v[{A3[U]}:{A3[U]+3}], v[{AO}:{AO+3}], {loc[(3,U,0)][1]}, v{vIDX}")
        if first: a("s_waitcnt lgkmcnt(0)"); first = False
        for _ in range(2):
            if pend: a(pend.pop(0))
        a(f"v_smfmac_f32_16x16x64_bf16 v[{A3[U]}:{A3[U]+3}], v[{AO+4}:{AO+7}], {loc[(3,U,1)][1]}, v{vIDX}")
        for _ in range(2):
            if pend: a(pend.pop(0))
        if U % 2 == 1 and U >= 3: pend += pair_out((U - 3) // 2)
    for x in pend: a(x)
    for x in pair_out(3): a(x)
    U8 = A3[8]
    a(f"""
    v_add_f32 v{U8}, v{U8}, v{U8+1}
    v_add_f32 v{U8+1}, v{U8+2}, v{U8+3}
    s_add_u32 s{S_STEP}, s{S_STEP}, 1
    v_mov_b32_dpp v{U8+2}, v{U8} quad_perm:[1,0,3,2] row_mask:0xf bank_mask:0xf
    v_mov_b32_dpp v{U8+3}, v{U8+1} quad_perm:[1,0,3,2] row_mask:0xf bank_mask:0xf
    v_cvt_pk_bf16_f32 v{U8}, v{U8}, v{U8+2}
    v_cvt_pk_bf16_f32 v{U8+1}, v{U8+1}, v{U8+3}
    buffer_store_dwordx2 v[{U8}:{U8+1}], v28, {WSR}, s{S_PW4} offen
    """)
    stamp(6)
    RL = 44
    a(f"""
    s_add_u32 s{S_KMO}, s{S_KMO}, {32*4096}
    s_add_u32 s{S_VMO}, s{S_VMO}, {32*2048}
    s_add_u32 s{S_KXO}, s{S_KXO}, {32*8192}
    s_add_u32 s{S_KXO2}, s{S_KXO2}, {32*8192}
    s_add_u32 s{S_VXO}, s{S_VXO}, {32*8192}
    s_mov_b32 s{S_T2}, {PART_SLOT}
    s_sub_u32 s{S_T3}, 0, s{S_T2}
    s_bitcmp1_b32 s{S_STEP}, 0
    s_cselect_b32 s{S_T0}, s{S_T2}, s{S_T3}
    s_add_u32 s{S_PWO}, s{S_PWO}, s{S_T0}
    s_add_u32 s{S_PW1}, s{S_PW1}, s{S_T0}
    s_add_u32 s{S_PW4}, s{S_PW4}, s{S_T0}
    """)
    lg.q = []
    w_read(0); w_read(1)
    a(f"s_cmp_ge_u32 s{S_JOB}, 72")
    a("s_cbranch_scc1 TEAM_NOJOB")
    SEL = 28
    a(f"""
    v_and_b32 v{RL}, 0x70, v{vWl}
    v_bfe_u32 v{RL+1}, v{vWl}, 7, 3
    v_lshl_add_u32 v{RL}, v{RL+1}, 9, v{RL}
    v_and_b32 v{RL+1}, 16, v{vWl}
    v_mov_b32 v{RL+2}, 0x3f80
    v_lshlrev_b32 v{RL+1}, v{RL+1}, v{RL+2}
    v_bfe_u32 v{RL+2}, v{vWl}, 5, 3
    v_cmp_eq_u32 vcc, 0, v{RL+2}
    v_cmp_eq_u32 s[98:99], 1, v{RL+2}
    v_cmp_eq_u32 s[100:101], 2, v{RL+2}
    v_cndmask_b32 v{SEL}, 0, v{RL+1}, vcc
    v_cmp_eq_u32 vcc, 3, v{RL+2}
    v_cndmask_b32 v{SEL+1}, 0, v{RL+1}, s[98:99]
    v_cndmask_b32 v{SEL+2}, 0, v{RL+1}, s[100:101]
    v_cndmask_b32 v{SEL+3}, 0, v{RL+1}, vcc
    v_bfe_u32 v{RL+1}, v{vWl}, 6, 1
    v_mul_u32_u24 v{RL+1}, s{S_JA}, v{RL+1}
    v_bfe_u32 v{RL+2}, v{vWl}, 8, 1
    v_mul_u32_u24 v{RL+2}, s{S_JD}, v{RL+2}
    v_add3_u32 v{RL+1}, v{RL+1}, v{RL+2}, s{S_JC}
    v_lshrrev_b32 v{RL+2}, 3, v{RL+1}
    v_and_b32 v{RL+1}, 7, v{RL+1}
    v_lshlrev_b32 v{RL+1}, 1, v{RL+1}
    v_lshl_add_u32 v{RL+1}, v{RL+2}, 7, v{RL+1}
    v_bfe_u32 v{RL+2}, v{vWl}, 4, 2
    v_lshl_add_u32 v{RL+1}, v{RL+2}, 5, v{RL+1}
    v_and_b32 v{RL+2}, 0x280, v{vWl}
    v_lshl_add_u32 v{RL+1}, v{RL+2}, 21, v{RL+1}
    """)
    for _ in range(W1_DELAY): a("s_nop 7")
    def w1_loads():
        for hh in range(4):
            a(f"buffer_load_dwordx4 v[{12+4*hh}:{15+4*hh}], v{RL}, {WSR}, s{S_RDO} offen offset:{128*hh} sc1")
    D = 32
    def w1_reduce(waits):
        for hh in range(4):
            if waits: a(f"s_waitcnt vmcnt({3-hh})")
            a(f"v_mfma_f32_16x16x32_bf16 v[{D}:{D+3}], v[{SEL}:{SEL+3}], v[{12+4*hh}:{15+4*hh}], {'0' if hh == 0 else vr(D,4)}")
        for r in range(4):
            a(f"v_add_f32_dpp v{D+r}, v{D+r}, v{D+r} row_ror:8 row_mask:0xf bank_mask:0xf")
        a(f"v_cvt_pk_bf16_f32 v{D+4}, v{D}, v{D+1}")
        a(f"v_cvt_pk_bf16_f32 v{D+5}, v{D+2}, v{D+3}")
    a.label("TEAM_W1")
    if dbg_time: a("s_add_u32 s96, s96, 1")
    w1_loads()
    w1_reduce(True)
    a(f"""
    v_cmp_u_f32 vcc, v{D}, v{D+2}
    s_cbranch_vccnz TEAM_W1_SLOW
    """)
    a.label("TEAM_W1_OK")
    stamp(7)
    a(f"""
    buffer_store_dword v{D+4}, v{RL+1}, {WSR}, s{S_MEMW} offen
    buffer_store_dword v{D+5}, v{RL+1}, {WSR}, s{S_MEMW} offen offset:16
    """)
    stamp(8)
    a("s_branch TEAM_W2PRE")
    a.label("TEAM_W1_SLOW")
    if dbg_time: a("s_add_u32 s96, s96, 1")
    w1_loads()
    a("s_waitcnt vmcnt(0)")
    a(f"v_max3_u32 v{RL+3}, v12, v13, v14")
    for k in range(15, 27, 2): a(f"v_max3_u32 v{RL+3}, v{RL+3}, v{k}, v{k+1}")
    a(f"""
    v_max_u32 v{RL+3}, v{RL+3}, v27
    v_cmp_eq_u32 vcc, -1, v{RL+3}
    s_cbranch_vccnz TEAM_W1_SLOW
    """)
    w1_reduce(False)
    a("s_branch TEAM_W1_OK")
    a.label("TEAM_NOJOB")
    a(f"""
    s_cmp_lg_u32 s{S_W}, 3
    s_cbranch_scc1 TEAM_W2PRE
    s_add_u32 s{S_T1}, s{S_STEP}, 1
    s_and_b32 s{S_T2}, s{S_T1}, 3
    s_cmp_lg_u32 s{S_T2}, 0
    s_cbranch_scc1 TEAM_TOUCH
    s_cmp_ge_u32 s{S_T1}, 64
    s_cbranch_scc1 TEAM_W2PRE
    s_lshl_b32 s{S_T1}, s{S_T1}, 4
    v_mov_b32 v12, {FLG+F_KV}
    """)
    a.label("TEAM_KVP")
    a(f"""
    buffer_load_dword v13, v12, {WSR}, s{S_T1} offen sc1
    s_waitcnt vmcnt(0)
    v_readfirstlane_b32 s{S_T2}, v13
    s_lshr_b32 s{S_T2}, s{S_T2}, s{S_H}
    s_bitcmp1_b32 s{S_T2}, 0
    s_cbranch_scc0 TEAM_KVP
    """)
    a.label("TEAM_TOUCH")
    a.label("TEAM_W2PRE")
    P0, P1, P2, P3 = 40, 45, 46, 47
    a(f"""
    v_and_b32 v{P0}, 0x3f0, v{vWl}
    v_and_b32 v{P1}, 0xf0, v{P0}
    s_lshl_b32 s{S_T2}, s{S_W}, 8
    s_lshl_b32 s{S_T3}, s{S_W}, 11
    s_add_u32 s{S_T3}, s{S_T3}, {L_SH}
    s_add_u32 s{S_T2}, s{S_T2}, {L_SH+8192}
    v_add_u32 v{P2}, s{S_T3}, v{P0}
    v_add_u32 v{P3}, s{S_T2}, v{P1}
    s_add_u32 s{S_MEMW}, s{S_MEMW}, 9216
    """)
    for r in range(4): zero4(ACC[r])
    a.label("TEAM_W2")
    if dbg_time: a("s_add_u32 s97, s97, 1")
    a(f"""
    buffer_load_dwordx4 v[12:15], v{P0}, {WSR}, s{S_MEMR} offen sc1
    buffer_load_dwordx4 v[16:19], v{P0}, {WSR}, s{S_MEMR} offen offset:1024 sc1
    buffer_load_dwordx4 v[20:23], v{P1}, {WSR}, s{S_MEMR3} offen sc1
    s_waitcnt vmcnt(0)
    ds_write_b128 v{P2}, v[12:15]
    ds_write_b128 v{P2}, v[16:19] offset:1024
    ds_write_b128 v{P3}, v[20:23]
    v_max3_u32 v12, v12, v13, v14
    v_max3_u32 v15, v15, v16, v17
    v_max3_u32 v18, v18, v19, v20
    v_max3_u32 v21, v21, v22, v23
    v_max3_u32 v12, v12, v15, v18
    v_max_u32 v12, v12, v21
    v_cmp_eq_u32 vcc, -1, v12
    s_cbranch_vccnz TEAM_W2
    """)
    stamp(9)
    if dbg_time:
        a(f"""
        s_waitcnt lgkmcnt(0)
        s_lshl_b32 s{S_T1}, s{S_STEP}, 7
        s_lshl_b32 s{S_T2}, s{S_H}, 2
        s_add_u32 s{S_T1}, s{S_T1}, s{S_T2}
        s_add_u32 s{S_T1}, s{S_T1}, s{S_W}
        s_lshl_b32 s{S_T1}, s{S_T1}, 6
        s_add_u32 s{S_T1}, s{S_T1}, 0x7000000
        v_mov_b32 v13, 0
        """)
        for i in range(12):
            a(f"v_writelane_b32 v12, s{66+2*i}, {i}")
        a(f"v_writelane_b32 v12, s96, 12")
        a(f"v_writelane_b32 v12, s97, 13")
        a(f"v_bfe_u32 v13, v{vWl}, 2, 8")
        a(f"s_mov_b64 exec, 0xffff")
        a(f"buffer_store_dword v12, v13, {WSR}, s{S_T1} offen")
        a(f"s_mov_b64 exec, -1")
        a.label("TEAM_NODUMP")
    a(f"""
    s_cmp_ge_u32 s{S_JOB}, 72
    s_cbranch_scc1 TEAM_NORESET
    v_mov_b32 v16, -1
    v_mov_b32 v17, -1
    v_mov_b32 v18, -1
    v_mov_b32 v19, -1
    """)
    for hh in range(4):
        a(f"buffer_store_dwordx4 v[16:19], v44, {WSR}, s{S_RDO} offen offset:{128*hh}")
    a.label("TEAM_NORESET")
    zero4(ACC[4]); zero4(ACC[5])
    a(f"""
    v_mov_b32 v12, s{S_STEP}
    v_mov_b32 v13, s{S_FKM}
    v_and_b32 v14, 0x3f0, v{vWl}
    v_lshlrev_b32 v14, 2, v14
    s_add_u32 s{S_RDO}, s{S_RDO}, s{S_T0}
    s_cmp_lt_u32 s{S_W}, 2
    s_cselect_b32 s{S_T1}, s{S_KXO}, s{S_VXO}
    s_and_b32 s{S_T2}, s{S_W}, 1
    s_lshl_b32 s{S_T2}, s{S_T2}, 12
    s_add_u32 s{S_T1}, s{S_T1}, s{S_T2}
    s_waitcnt lgkmcnt(0)
    s_barrier
    buffer_load_dword v{vLane}, v14, {WSR}, s{S_T1} offen
    buffer_store_dword v12, v13, {WSR}, 0 offen sc1
    s_add_u32 s{S_MEMR}, s{S_MEMR}, 9216
    s_add_u32 s{S_MEMR3}, s{S_MEMR3}, 9216
    s_branch TEAM_STEP
    """)
    a.label("TEAM_LAST")
    a(f"""
    s_waitcnt vmcnt(0) lgkmcnt(0)
    v_mov_b32 v28, 64
    v_mov_b32 v29, s{S_FKM}
    buffer_store_dword v28, v29, {WSR}, 0 offen sc1
    s_endpgm
    """)
```

```python
import sys
from asmlib import *
from layout import *
from team import *
from qkv import *
from svc import *
from s4 import *

NAME = "gated_mix__ssm_conv_s4__memory_aug_recurrent_mem_tr__prompt"

def srd(a, s, karg, nbytes):
    a(f"s_load_dwordx2 s[{s}:{s+1}], s[0:1], {karg}")
def srd_fin(a, s, nbytes):
    a(f"s_and_b32 s{s+1}, s{s+1}, 0xffff")
    a(f"s_mov_b32 s{s+2}, {nbytes}")
    a(f"s_mov_b32 s{s+3}, 0x00020000")

def prologue(a):
    a(f"""
    s_cmp_ge_u32 s2, 256
    s_cbranch_scc1 EXIT
    s_load_dwordx2 s[{S_WS}:{S_WS+1}], s[0:1], 152
    s_load_dwordx2 s[{S_DBG}:{S_DBG+1}], s[0:1], 144
    s_load_dwordx2 s[{S_A}:{S_A+1}], s[0:1], 88
    s_load_dwordx2 s[{S_B}:{S_B+1}], s[0:1], 96
    s_load_dwordx2 s[{S_C}:{S_C+1}], s[0:1], 104
    s_load_dwordx2 s[{S_D}:{S_D+1}], s[0:1], 112
    s_load_dwordx2 s[{S_OUT}:{S_OUT+1}], s[0:1], 136
    v_lshrrev_b32 v1, 6, v0
    v_readfirstlane_b32 s{S_W}, v1
    s_getreg_b32 s{S_T0}, hwreg(HW_REG_XCC_ID)
    s_and_b32 s{S_T0}, s{S_T0}, 15
    s_waitcnt lgkmcnt(0)
    """)
    srd_fin(a, S_WS, WS_SIZE); srd_fin(a, S_DBG, 256)
    for s in (S_A, S_B, S_C, S_D): srd_fin(a, s, 4718592)
    srd_fin(a, S_OUT, 2359296)
    a(f"""
    s_cmp_lg_u32 s2, 0
    s_cbranch_scc1 NOINIT
    v_mov_b32 v4, 0
    v_mov_b32 v5, 0
    v_mov_b32 v6, 0
    v_mov_b32 v7, 0
    v_lshlrev_b32 v1, 4, v0
    """)
    for u in range(FLG_BYTES // 4096):
        a(f"s_mov_b32 s{S_T1}, {FLG + 4096*u}")
        a(f"buffer_store_dwordx4 v[4:7], v1, s[{S_WS}:{S_WS+3}], s{S_T1} offen sc1")
    a(f"""
    s_waitcnt vmcnt(0)
    s_barrier
    v_mov_b32 v1, 1
    v_mov_b32 v2, {D_INIT*4}
    buffer_store_dword v1, v2, s[{S_DBG}:{S_DBG+3}], 0 offen sc1
    """)
    a.label("NOINIT")
    a(f"""
    s_cmp_lg_u32 s{S_W}, 0
    s_cbranch_scc1 ROLE_WAIT
    s_mov_b64 exec, 1
    v_mov_b32 v1, 1
    s_lshl_b32 s{S_T1}, s{S_T0}, 2
    v_mov_b32 v2, s{S_T1}
    buffer_atomic_add v1, v2, s[{S_DBG}:{S_DBG+3}], 0 offen sc0
    s_waitcnt vmcnt(0)
    v_readfirstlane_b32 s{S_H}, v1
    s_add_u32 s{S_T0}, s{S_T0}, 1           ; xcc+1
    v_mov_b32 v2, {D_CHOSEN*4}
    s_cmp_lg_u32 s{S_H}, 31
    s_cbranch_scc1 ROLE_NOCAS
    v_mov_b32 v4, s{S_T0}
    v_mov_b32 v5, 0
    buffer_atomic_cmpswap v[4:5], v2, s[{S_DBG}:{S_DBG+3}], 0 offen
    """)
    a.label("ROLE_NOCAS")
    a.label("ROLE_POLL")
    a(f"""
    buffer_load_dwordx4 v[4:7], v2, s[{S_DBG}:{S_DBG+3}], 0 offen sc1
    s_waitcnt vmcnt(0)
    v_readfirstlane_b32 s{S_T1}, v4
    v_readfirstlane_b32 s{S_T2}, v6
    s_cmp_eq_u32 s{S_T1}, 0
    s_cbranch_scc1 ROLE_POLL
    s_cmp_eq_u32 s{S_T2}, 0
    s_cbranch_scc1 ROLE_POLL
    s_mov_b32 s{S_T2}, 0
    s_cmp_lg_u32 s{S_T1}, s{S_T0}
    s_cbranch_scc1 ROLE_WORKER
    s_cmp_ge_u32 s{S_H}, 32
    s_cbranch_scc1 ROLE_WORKER
    s_mov_b32 s{S_T2}, 1                    ; team
    s_lshr_b32 s{S_T1}, s2, 5
    s_lshl_b32 s{S_T1}, s{S_T1}, 2
    s_add_u32 s{S_T1}, s{S_T1}, {D_MASK*4}
    s_and_b32 s{S_T3}, s2, 31
    s_lshl_b32 s{S_T3}, 1, s{S_T3}
    v_mov_b32 v1, s{S_T3}
    v_mov_b32 v2, s{S_T1}
    buffer_atomic_or v1, v2, s[{S_DBG}:{S_DBG+3}], 0 offen
    s_branch ROLE_SET
    """)
    a.label("ROLE_WORKER")
    a(f"v_mov_b32 v2, {D_MASK*4}")
    a.label("ROLE_MASK")
    a(f"""
    buffer_load_dwordx4 v[4:7], v2, s[{S_DBG}:{S_DBG+3}], 0 offen sc1
    buffer_load_dwordx4 v[8:11], v2, s[{S_DBG}:{S_DBG+3}], 0 offen offset:16 sc1
    s_waitcnt vmcnt(0)
    s_mov_b32 s{S_T1}, 0
    s_mov_b32 s{S_H}, s2
    s_lshr_b32 s{S_T3}, s2, 5
    s_and_b32 s40, s2, 31
    s_lshl_b32 s40, 1, s40
    s_sub_u32 s40, s40, 1
    """)
    for k in range(8):
        a(f"""
        v_readfirstlane_b32 s41, v{4+k}
        s_bcnt1_i32_b32 s42, s41
        s_add_u32 s{S_T1}, s{S_T1}, s42
        s_and_b32 s43, s41, s40
        s_bcnt1_i32_b32 s43, s43
        s_cmp_eq_u32 s{S_T3}, {k}
        s_cselect_b32 s43, s43, 0
        s_cmp_gt_u32 s{S_T3}, {k}
        s_cselect_b32 s42, s42, s43
        s_sub_u32 s{S_H}, s{S_H}, s42
        """)
    a(f"""
    s_cmp_lg_u32 s{S_T1}, 32
    s_cbranch_scc1 ROLE_MASK
    """)
    a.label("ROLE_SET")
    a(f"""
    v_mov_b32 v4, s{S_T2}
    v_mov_b32 v5, s{S_H}
    v_mov_b32 v3, 0
    ds_write_b64 v3, v[4:5]
    s_waitcnt lgkmcnt(0)
    s_mov_b64 exec, -1
    """)
    a.label("ROLE_WAIT")
    a(f"""
    s_barrier
    v_mov_b32 v3, 0
    ds_read_b64 v[4:5], v3
    s_waitcnt lgkmcnt(0)
    v_readfirstlane_b32 s{S_T2}, v4
    v_readfirstlane_b32 s{S_H}, v5
    s_barrier
    s_cmp_eq_u32 s{S_T2}, 1
    s_cbranch_scc1 TEAM
    """)

def build(test_team_only=True):
    a = Asm()
    a.raw(open("cdna_kernels/%s.s.ref" % NAME).read().split("; Override")[0].rstrip())
    a.raw("; @launch grid=(256,1,1) block=(256,1,1) lds=163840")
    a.raw('.amdgcn_target "amdgcn-amd-amdhsa--gfx950"\n.text\n.globl %s_kernel\n.p2align 8\n.type %s_kernel,@function' % (NAME, NAME))
    a.label(NAME + "_kernel")
    prologue(a)
    gen_qkv(a)
    gen_gate(a)
    gen_s4(a)
    a(f"""
    s_cmp_ge_u32 s{S_RANK}, {ATT0}
    s_cbranch_scc1 ATT
    """)
    gen_oproj(a)
    gen_attn(a)
    a.label("EXIT")
    a("s_endpgm")
    gen_team(a, dbg_time=('--time' in sys.argv))
    a.raw('''.section .rodata,"a"
.p2align 6
.amdhsa_kernel %s_kernel
  .amdhsa_next_free_vgpr 512
  .amdhsa_next_free_sgpr 102
  .amdhsa_accum_offset 256
  .amdhsa_group_segment_fixed_size 0
  .amdhsa_kernarg_size 160
  .amdhsa_user_sgpr_count 2
  .amdhsa_user_sgpr_kernarg_segment_ptr 1
  .amdhsa_system_sgpr_workgroup_id_x 1
.end_amdhsa_kernel''' % NAME)
    return a.render()

if __name__ == "__main__":
    out = sys.argv[1] if len(sys.argv) > 1 else "cdna_kernels/%s.s" % NAME
    open(out, "w").write(build())
    print("wrote", out)
```

```python
from asmlib import *
from layout import *
from team import *

S_RANK = 33
S_TILE = 40; S_RB = 41; S_HD = 42; S_KOFF = 43; S_WOFF = 44; S_CNT = 45; S_XS = 46
S_KB = 46; S_WB_ = 47; S_CK = 52; S_WL = 53
S_X = 48

def gen_qkv(a):
    WSR = f"s[{S_WS}:{S_WS+3}]"; XR = f"s[{S_X}:{S_X+3}]"
    SR = [f"s[{s}:{s+3}]" for s in (S_A, S_B, S_C)]
    vL, vXo, vDo, vT00, vT01, vT10, vT11, vtid = 1, 2, 3, 4, 5, 6, 7, 8
    EW = 10
    vVW, vRD, vGQ, vGV = 18, 19, 20, 21
    XF = [32, 40]
    XA = 144
    WF = [96, 120]
    def acc(m, mt, nt): return 16 * ((m * 2 + mt) * 2 + nt)
    a.label("QKV")
    a(f"""
    v_mov_b32 v{vtid}, v0
    v_and_b32 v{vL}, 63, v0
    s_load_dwordx2 s[{S_X}:{S_X+1}], s[0:1], 0
    s_lshr_b32 s{S_T0}, s{S_W}, 1          ; rh
    s_and_b32 s{S_T1}, s{S_W}, 1           ; ch
    v_lshrrev_b32 v24, 4, v{vL}
    v_and_b32 v25, 15, v{vL}
    v_lshlrev_b32 v26, 2, v24
    v_xor_b32 v25, v25, v26
    s_lshl_b32 s{S_T2}, s{S_W}, 2
    v_add_u32 v24, s{S_T2}, v24
    v_lshlrev_b32 v24, 13, v24
    v_lshl_add_u32 v{vDo}, v25, 4, v24
    v_bfe_u32 v24, v{vL}, 2, 2             ; r
    v_lshrrev_b32 v25, 5, v{vL}            ; q>>1
    v_lshl_add_u32 v25, v25, 3, v24        ; row
    v_bfe_u32 v26, v{vL}, 4, 1
    v_bfe_u32 v27, v{vL}, 1, 1
    v_lshl_add_u32 v26, v26, 1, v27
    s_lshl_b32 s{S_T2}, s{S_T1}, 3
    v_add_u32 v26, s{S_T2}, v26            ; cc
    v_lshlrev_b32 v24, 2, v24
    v_xor_b32 v26, v26, v24
    v_lshlrev_b32 v26, 4, v26
    v_lshl_add_u32 v26, v25, 8, v26
    v_and_b32 v27, 1, v{vL}
    v_lshl_add_u32 v{vT00}, v27, 3, v26
    v_xor_b32 v{vT01}, 64, v{vT00}
    v_add_u32 v{vT10}, 65536, v{vT00}
    v_add_u32 v{vT11}, 65536, v{vT01}
    v_lshrrev_b32 v24, 3, v{vL}
    v_and_b32 v25, 7, v{vL}
    v_xor_b32 v25, v25, v24
    s_lshl_b32 s{S_T2}, s{S_W}, 3
    v_add_u32 v24, s{S_T2}, v24
    v_mul_u32_u24 v24, 1152, v24
    v_lshl_add_u32 v{vXo}, v25, 4, v24
    v_and_b32 v24, 31, v{vL}
    v_lshrrev_b32 v25, 5, v{vL}
    v_and_b32 v26, 7, v{vL}
    v_xor_b32 v25, v25, v26
    v_lshlrev_b32 v25, 4, v25
    v_lshl_add_u32 v25, v24, 7, v25
    s_lshl_b32 s{S_T2}, s{S_T0}, 13
    s_add_u32 s{S_T2}, s{S_T2}, 49152
    v_add_u32 v{XA}, s{S_T2}, v25
    v_xor_b32 v{XA+1}, 32, v{XA}
    v_xor_b32 v{XA+2}, 64, v{XA}
    v_xor_b32 v{XA+3}, 96, v{XA}
    v_add_u32 v{XA+4}, 65536, v{XA}
    v_add_u32 v{XA+5}, 65536, v{XA+1}
    v_add_u32 v{XA+6}, 65536, v{XA+2}
    v_add_u32 v{XA+7}, 65536, v{XA+3}
    s_lshl_b32 s{S_WL}, s{S_W}, 10
    v_and_b32 v24, 31, v{vL}
    v_and_b32 v25, 15, v{vL}
    s_lshl_b32 s{S_T2}, s{S_T1}, 3
    v_xor_b32 v25, s{S_T2}, v25
    v_lshlrev_b32 v25, 4, v25
    v_lshl_add_u32 v25, v24, 8, v25
    v_lshrrev_b32 v26, 5, v{vL}
    v_lshl_add_u32 v25, v26, 3, v25
    s_mul_i32 s{S_T2}, s{S_T0}, 49152
    v_add_u32 v{EW}, s{S_T2}, v25
    """)
    for k in range(1, 8): a(f"v_xor_b32 v{EW+k}, {16*k}, v{EW}")
    a(f"""
    s_lshl_b32 s{S_T3}, s{S_T1}, 12
    s_add_u32 s{S_T2}, s{S_T2}, s{S_T3}
    s_add_u32 s{S_T2}, s{S_T2}, 16384
    v_lshlrev_b32 v24, 6, v24
    v_lshl_add_u32 v24, v26, 4, v24
    v_add_u32 v{vVW}, s{S_T2}, v24
    v_lshlrev_b32 v{vRD}, 4, v{vtid}
    v_lshrrev_b32 v24, 4, v{vtid}
    v_and_b32 v25, 15, v{vtid}
    v_xor_b32 v25, v25, v24
    v_lshlrev_b32 v25, 4, v25
    v_lshl_add_u32 v{vGQ}, v24, 8, v25
    s_waitcnt lgkmcnt(0)
    s_and_b32 s{S_X+1}, s{S_X+1}, 0xffff
    s_mov_b32 s{S_X+2}, 2359296
    s_mov_b32 s{S_X+3}, 0x00020000
    s_mov_b32 s{S_TILE}, 0
    """)
    a.label("QKV_TILE")
    a(f"""
    ; S_TILE = round (0..2): rounds 0,1: h = rank/7, rb = 7*round + rank%7 ; round 2: rank<64: h = rank>>1, rb = 14 + (rank&1)
    s_cmp_ge_u32 s{S_TILE}, 3
    s_cbranch_scc1 QKV_DONE
    s_mul_i32 s{S_HD}, s{S_RANK}, 9363
    s_lshr_b32 s{S_HD}, s{S_HD}, 16
    s_mul_i32 s{S_T0}, s{S_HD}, 7
    s_sub_u32 s{S_RB}, s{S_RANK}, s{S_T0}
    s_mul_i32 s{S_T0}, s{S_TILE}, 7
    s_add_u32 s{S_RB}, s{S_RB}, s{S_T0}
    s_cmp_lg_u32 s{S_TILE}, 2
    s_cbranch_scc1 QKV_GO
    s_cmp_ge_u32 s{S_RANK}, 64
    s_cbranch_scc1 QKV_DONE
    s_lshr_b32 s{S_HD}, s{S_RANK}, 1
    s_and_b32 s{S_RB}, s{S_RANK}, 1
    s_add_u32 s{S_RB}, s{S_RB}, 14
    """)
    a.label("QKV_GO")
    a(f"""
    s_mul_i32 s{S_KB}, s{S_RB}, {128*1152}
    s_lshl_b32 s{S_WB_}, s{S_HD}, 8
    s_mul_i32 s{S_CK}, s{S_RB}, 4
    s_mul_i32 s{S_T0}, s{S_CK}, 7282
    s_lshr_b32 s{S_T0}, s{S_T0}, 16
    s_mul_i32 s{S_T0}, s{S_T0}, 9
    s_sub_u32 s{S_CK}, s{S_CK}, s{S_T0}
    """)
    def issue_list(buf):
        L_ = []
        L_.append(f"""
        s_lshl_b32 s{S_KOFF}, s{S_CK}, 7
        s_add_u32 s{S_KOFF}, s{S_KOFF}, s{S_KB}
        s_lshl_b32 s{S_WOFF}, s{S_CK}, 19
        s_add_u32 s{S_WOFF}, s{S_WOFF}, s{S_WB_}
        s_add_u32 s{S_CK}, s{S_CK}, 1
        s_cmp_eq_u32 s{S_CK}, 9
        s_cselect_b32 s{S_CK}, 0, s{S_CK}
        """)
        for u in range(4):
            L_.append(f"""
            s_add_u32 m0, s{S_WL}, {buf*65536 + 49152 + u*4096}
            s_add_u32 s{S_T1}, s{S_KOFF}, {u*32*1152}
            buffer_load_dwordx4 v{vXo}, {XR}, s{S_T1} offen lds
            """)
        for m in range(3):
            for u in range(4):
                L_.append(f"""
                s_add_u32 m0, s{S_WL}, {buf*65536 + m*16384 + u*4096}
                s_add_u32 s{S_T1}, s{S_WOFF}, {u*131072}
                buffer_load_dwordx4 v{vDo}, {SR[m]}, s{S_T1} offen lds
                """)
        return L_
    def wreads(buf, ks):
        for mt in range(2):
            b = XF[ks % 2] + 4 * mt
            a(f"ds_read_b128 v[{b}:{b+3}], v{XA + 4*buf + ks} offset:{4096*mt}")
        for m in range(3):
            for nt in range(2):
                b = WF[ks % 2] + 8 * m + 4 * nt
                ad = [[vT00, vT01], [vT10, vT11]][buf][nt]
                for hh in range(2):
                    a(f"ds_read_b64_tr_b16 v[{b+2*hh}:{b+2*hh+1}], v{ad} offset:{m*16384 + ks*4096 + hh*1024}")
    def compute(buf, first, dma):
        dma = list(dma)
        wreads(buf, 0)
        if dma: a(dma.pop(0))
        n = 0
        for ks in range(4):
            if ks < 3:
                wreads(buf, ks + 1)
                a("s_waitcnt lgkmcnt(14)")
            else:
                a("s_waitcnt lgkmcnt(0)")
            for m in range(3):
                for nt in range(2):
                    for mt in range(2):
                        w = vr(WF[ks % 2] + 8 * m + 4 * nt, 4); x = vr(XF[ks % 2] + 4 * mt, 4)
                        d = ar(acc(m, mt, nt), 16)
                        c = "0" if (first and ks == 0) else d
                        if m < 2: a(f"v_mfma_f32_32x32x16_bf16 {d}, {w}, {x}, {c}")
                        else: a(f"v_mfma_f32_32x32x16_bf16 {d}, {x}, {w}, {c}")
                        n += 1
                        if n % 2 == 0 and dma: a(dma.pop(0))
        assert not dma
    for x in issue_list(0): a(x)
    a("s_waitcnt vmcnt(0)\ns_barrier")
    rt(a, 112, S_TILE)
    compute(0, True, issue_list(1))
    a(f"s_mov_b32 s{S_CNT}, 0")
    a.label("QKV_LOOP")
    a("s_waitcnt vmcnt(0)\ns_barrier")
    compute(1, False, issue_list(0))
    a("s_waitcnt vmcnt(0)\ns_barrier")
    a(f"s_cmp_eq_u32 s{S_CNT}, 3")
    a("s_cbranch_scc1 QKV_LASTC")
    compute(0, False, issue_list(1))
    a(f"""
    s_add_u32 s{S_CNT}, s{S_CNT}, 1
    s_branch QKV_LOOP
    """)
    a.label("QKV_LASTC")
    compute(0, False, [])
    a(f"""
    s_nop 15
    s_barrier
    """)
    rt(a, 100, S_TILE)
    T = 32
    for m in range(2):
        for mt in range(2):
            for nt in range(2):
                base = acc(m, mt, nt)
                for r in range(16): a(f"v_accvgpr_read_b32 v{T+r}, a{base+r}")
                for q in range(4):
                    a(f"v_cvt_pk_bf16_f32 v{T+16+2*q}, v{T+4*q}, v{T+4*q+1}")
                    a(f"v_cvt_pk_bf16_f32 v{T+17+2*q}, v{T+4*q+2}, v{T+4*q+3}")
                for q in range(4):
                    a(f"ds_write_b64 v{EW+4*nt+q}, v[{T+16+2*q}:{T+17+2*q}] offset:{mt*24576 + m*8192}")
                T = 96 - T
    for mt in range(2):
        for nt in range(2):
            base = acc(2, mt, nt)
            for r in range(16): a(f"v_accvgpr_read_b32 v{T+r}, a{base+r}")
            for qp in range(2):
                a(f"v_cvt_pk_bf16_f32 v{T+16+4*qp}, v{T+4*qp}, v{T+4*qp+1}")
                a(f"v_cvt_pk_bf16_f32 v{T+17+4*qp}, v{T+4*qp+2}, v{T+4*qp+3}")
                a(f"v_cvt_pk_bf16_f32 v{T+18+4*qp}, v{T+8+4*qp}, v{T+8+4*qp+1}")
                a(f"v_cvt_pk_bf16_f32 v{T+19+4*qp}, v{T+8+4*qp+2}, v{T+8+4*qp+3}")
            for qp in range(2):
                a(f"ds_write_b128 v{vVW}, v[{T+16+4*qp}:{T+19+4*qp}] offset:{mt*24576 + nt*2048 + qp*32}")
            T = 96 - T
    a("s_waitcnt lgkmcnt(0)\ns_barrier")
    rt(a, 104, S_TILE)
    a(f"""
    s_lshl_b32 s{S_T0}, s{S_RB}, 7
    s_add_u32 s{S_T0}, s{S_T0}, s{S_HD}
    s_lshl_b32 s{S_T0}, s{S_T0}, 13          ; ((4rb)*32 + h)*8192
    """)
    R = 32
    regions = [QX, KX, VX]
    n = 0
    for m in (1, 2, 0):
        for sg in range(4):
            for u in range(2):
                off = sg * 24576 + m * 8192 + u * 4096
                b = R + 4 * n
                if off < 65536: a(f"ds_read_b128 v[{b}:{b+3}], v{vRD} offset:{off}")
                else:
                    a(f"v_add_u32 v24, 65536, v{vRD}")
                    a(f"ds_read_b128 v[{b}:{b+3}], v24 offset:{off-65536}")
                n += 1
    n = 0
    for m in (1, 2, 0):
        for sg in range(4):
            for u in range(2):
                b = R + 4 * n
                if n % 4 == 0: a(f"s_waitcnt lgkmcnt({min(15, 24-n-4)})")
                a(f"s_add_u32 s{S_T1}, s{S_T0}, {regions[m] + sg*32*8192 + u*4096}")
                a(f"buffer_store_dwordx4 v[{b}:{b+3}], v{vGQ if m < 2 else vRD}, {WSR}, s{S_T1} offen sc1")
                n += 1
    a(f"""
    s_waitcnt vmcnt(0)
    s_barrier
    s_cmp_lg_u32 s{S_W}, 0
    s_cbranch_scc1 QKV_NEXT
    s_lshl_b32 s{S_T0}, 1, s{S_HD}
    s_lshl_b32 s{S_T1}, s{S_RB}, 6
    s_add_u32 s{S_T1}, s{S_T1}, {FLG+F_KV}
    v_mov_b32 v24, s{S_T0}
    v_mov_b32 v25, s{S_T1}
    s_mov_b64 exec, 1
    buffer_atomic_or v24, v25, {WSR}, 0 offen
    s_mov_b64 exec, -1
    """)
    a.label("QKV_NEXT")
    rt(a, 108, S_TILE)
    a(f"""
    s_add_u32 s{S_TILE}, s{S_TILE}, 1
    s_branch QKV_TILE
    """)
    a.label("QKV_DONE")
```

```python
from asmlib import *
from layout import *

class Q:
    def __init__(self, a, name, maxc):
        self.a = a; self.name = name; self.maxc = maxc; self.q = []
    def issue(self, tag):
        self.q.append(tag)
    def wait(self, tag):
        if tag not in self.q: return
        idx = max(i for i, t in enumerate(self.q) if t == tag)
        n = len(self.q) - 1 - idx
        assert n <= self.maxc, (self.name, tag, n)
        self.a(f"s_waitcnt {self.name}({n})")
        self.q = self.q[idx + 1:]
    def wait_all(self):
        self.a(f"s_waitcnt {self.name}(0)")
        self.q = []
    def has(self, tag):
        return tag in self.q

S_WS = 4; S_DBG = 8; S_A = 12; S_B = 16; S_C = 20; S_D = 24; S_OUT = 28
S_W = 32
S_H = 33
S_STEP = 34
S_T0 = 35; S_T1 = 36; S_T2 = 37; S_T3 = 38
S_MHG = 40
S_CEXP = 50
S_KXO = 52; S_VXO = 53; S_KMO = 54; S_VMO = 55; S_PWO = 56; S_RDO = 57; S_MEMW = 58; S_MEMR = 59
S_JOB = 60; S_FKM = 61; S_KXO2 = 62; S_MEMR3 = 63
S_PW1 = 42; S_PW4 = 45; S_JA = 43; S_JD = 44; S_JC = 46
OOB = 0x7ff00000
import sys
RT = '--rt' in sys.argv
DBGT = 0x7800000
def rt(a, idx, sidx=None):
    if not RT: return
    a(f"""
    s_memrealtime s[92:93]
    s_lshl_b32 s94, s2, 10
    s_add_u32 s94, s94, {DBGT + 4*idx}
    s_waitcnt lgkmcnt(0)
    """)
    if sidx is not None:
        a(f"s_lshl_b32 s95, s{sidx}, 2")
        a(f"s_add_u32 s94, s94, s95")
    a(f"""
    v_mov_b32 v22, s92
    v_mov_b32 v23, 0
    buffer_store_dword v22, v23, s[{S_WS}:{S_WS+3}], s94 offen
    """)

import os
W1_GAP = int(os.environ.get('W1_GAP', 0)); W2_GAP = int(os.environ.get('W2_GAP', 0))
W1_PRE = int(os.environ.get('W1_PRE', 0)); W2_PRE = int(os.environ.get('W2_PRE', 0)); NJ_PRE = int(os.environ.get('NJ_PRE', 0))
RESET_LATE = int(os.environ.get('RESET_LATE', 0))
S_TCH = 47

def frag_regs():
    loc = {}
    regs = [ar(8 * i, 8) for i in range(32)] + [vr(80 + 8 * i, 8) for i in range(22)]
    ri = 0; m = 0
    order = [(T, kk) for kk in range(6) for T in range(6)]
    order += [(T, kk) for kk in range(6, 9) for T in range(4)]
    order += [(T, kk) for kk in range(6, 9) for T in (4, 5)]
    for n, (T, kk) in enumerate(order):
        if n % 3 == 2:
            loc[(1, T, kk)] = ("lds", m); m += 1
        else:
            loc[(1, T, kk)] = ("reg", regs[ri]); ri += 1
    for U in range(9):
        for ks in range(2):
            loc[(3, U, ks)] = ("reg", regs[ri]); ri += 1
    assert m == 18 and ri == 54
    return loc, order

def sub(reg8):
    k = reg8[0]; lo = int(reg8[2:reg8.index(":")])
    return k, lo

def rng(k, lo, n):
    return f"{k}[{lo}:{lo+n-1}]" if n > 1 else f"{k}{lo}"

def gen_team(a, dbg_time=False):
    loc, order = frag_regs()
    vIDX, vWl, vSh, vZw, vZr, vSw, vSrX, vSr0, vOr, vLane, vPW, vKX = range(12)
    vZero = vIDX
    AB = [12, 16, 20]
    ACC = [24, 28, 32, 36, 40, 44]
    WB = [48, 56]
    KXR = 64; VXR = 72
    WSR = f"s[{S_WS}:{S_WS+3}]"
    lg = Q(a, "lgkmcnt", 15); vm = Q(a, "vmcnt", 63)
    def stamp(i):
        if dbg_time: a(f"{'s_memrealtime' if '--real' in sys.argv else 's_memtime'} s[{66+2*i}:{67+2*i}]")

    a.label("TEAM")
    rt(a, 0)
    stamp(10)
    a(f"v_and_b32 v{vLane}, 63, v0")
    a(f"v_mov_b32 v79, v0")
    L = f"v{vLane}"
    a(f"""
    v_and_b32 v12, 15, {L}            ; i
    v_lshrrev_b32 v13, 4, {L}         ; g
    v_and_b32 v14, 7, {L}             ; i&7
    v_bfe_u32 v15, {L}, 3, 1          ; i>>3
    v_lshrrev_b32 v16, 5, {L}         ; lane>>5 = g>>1
    v_and_b32 v17, 1, v13             ; g&1
    v_and_b32 v22, 1, {L}             ; hf = i&1
    v_lshrrev_b32 v23, 1, v12         ; t = i>>1
    s_mul_i32 s{S_T0}, s{S_W}, {L_REG}
    s_add_u32 s{S_T0}, s{S_T0}, {L_SC}        ; scratch region of this wave
    v_mov_b32 v18, 0x00104444
    v_mov_b32 v19, 0x0010eeee
    v_cmp_lt_u32 vcc, 0, v22
    v_cndmask_b32 v{vIDX}, v18, v19, vcc
    s_mul_i32 s{S_T1}, s{S_W}, 36864
    v_lshlrev_b32 v18, 4, {L}
    v_add_u32 v{vWl}, s{S_T1}, v18
    v_lshlrev_b32 v20, 8, v13
    v_lshl_add_u32 v20, v22, 7, v20
    v_lshl_add_u32 v20, v23, 4, v20
    v_add_u32 v{vSh}, {L_SH}, v20
    ; vZw = region + n*32 + g*4
    v_lshlrev_b32 v20, 5, v12
    v_lshl_add_u32 v20, v13, 2, v20
    v_add_u32 v{vZw}, s{S_T0}, v20
    v_bfe_u32 v20, {L}, 2, 2          ; r
    v_lshl_add_u32 v20, v13, 3, v20   ; 8g+r
    v_lshlrev_b32 v20, 5, v20
    v_and_b32 v21, 3, {L}
    v_lshl_add_u32 v20, v21, 3, v20
    v_add_u32 v{vZr}, s{S_T0}, v20
    v_lshl_add_u32 v20, v13, 3, v14   ; g*8+(i&7)
    v_lshlrev_b32 v20, 4, v20
    v_add_u32 v21, s{S_T0}, v20
    v_mov_b32 v19, 0x40000
    v_cmp_lt_u32 vcc, 0, v15          ; i>=8
    v_cndmask_b32 v{vSw}, v19, v21, vcc
    v_mov_b32 v19, 1280
    v_mov_b32 v21, 768
    v_cndmask_b32 v19, v19, v21, vcc
    v_add3_u32 v{vSrX}, v20, v19, 0
    v_add_u32 v{vSrX}, {L_SC}, v{vSrX}
    v_lshl_add_u32 v20, v16, 3, v14
    v_lshlrev_b32 v20, 4, v20
    v_lshl_add_u32 v20, v17, 3, v20
    v_add_u32 v{vSr0}, {L_SC}, v20
    v_lshl_add_u32 v20, v17, 1, v22
    v_lshl_add_u32 v20, v20, 3, v23
    v_lshlrev_b32 v20, 4, v20
    v_mul_u32_u24 v21, {L_REG}, v16
    v_add3_u32 v{vOr}, v20, v21, 0
    v_add_u32 v{vOr}, {L_SC+256}, v{vOr}
    ; vPW = (18w + (n>>1))*4096 + ((n&1)*4+g)*16
    s_mul_i32 s{S_T1}, s{S_W}, 18
    v_add_u32 v20, s{S_T1}, v23
    v_lshlrev_b32 v20, 12, v20
    v_lshl_add_u32 v21, v22, 2, v13
    v_lshl_add_u32 v{vPW}, v21, 4, v20
    ; vKX = i*256 + w*64 + g*16
    v_lshlrev_b32 v20, 8, v12
    v_lshl_add_u32 v20, v13, 4, v20
    s_lshl_b32 s{S_T1}, s{S_W}, 6
    v_add_u32 v{vKX}, s{S_T1}, v20
    s_mov_b32 s{S_MHG}, 0x00f000f0
    s_mov_b32 s{S_MHG+1}, 0x00f000f0
    s_mov_b32 s{S_CEXP}, 0x3e0293ee
    """)
    a(f"""
    v_mov_b32 v24, -1
    v_mov_b32 v25, -1
    v_mov_b32 v26, -1
    v_mov_b32 v27, -1
    v_lshlrev_b32 v28, 4, v79
    s_mul_i32 s{S_T1}, s{S_H}, 18432
    s_add_u32 s{S_T1}, s{S_T1}, {PART}
    """)
    for u in range(4):
        a(f"buffer_store_dwordx4 v[24:27], v28, {WSR}, s{S_T1} offen")
        a(f"s_add_u32 s{S_T1}, s{S_T1}, 4096")
    a(f"""
    v_cmp_gt_u32 vcc, 128, v79
    s_mov_b64 exec, vcc
    buffer_store_dwordx4 v[24:27], v28, {WSR}, s{S_T1} offen
    s_mov_b64 exec, -1
    s_mul_i32 s{S_T1}, s{S_H}, 18720
    s_add_u32 s{S_T1}, s{S_T1}, {MEM}
    """)
    for u in range(4):
        a(f"buffer_store_dwordx4 v[24:27], v28, {WSR}, s{S_T1} offen")
        a(f"s_add_u32 s{S_T1}, s{S_T1}, 4096")
    a(f"""
    v_cmp_gt_u32 vcc, 146, v79
    s_mov_b64 exec, vcc
    buffer_store_dwordx4 v[24:27], v28, {WSR}, s{S_T1} offen
    s_mov_b64 exec, -1
    """)
    a(f"""
    v_lshrrev_b32 v24, 4, v79         ; rho0
    v_and_b32 v25, 15, v79            ; cc
    v_and_b32 v26, 7, v24
    v_bfe_u32 v27, v24, 3, 1
    v_lshlrev_b32 v27, 1, v27
    v_xor_b32 v26, v26, v27           ; key1
    v_lshlrev_b32 v26, 1, v26
    v_xor_b32 v26, v25, v26           ; pos
    v_lshlrev_b32 v26, 4, v26
    v_lshl_add_u32 v26, v24, 8, v26
    v_add_u32 v28, {L_SH}, v26
    v_and_b32 v27, 1, v24
    v_bfe_u32 v26, v24, 2, 1
    v_lshl_add_u32 v27, v26, 1, v27
    v_lshlrev_b32 v27, 1, v27
    v_xor_b32 v26, v25, v27
    v_lshlrev_b32 v26, 4, v26
    v_lshl_add_u32 v26, v24, 8, v26
    v_add_u32 v29, {L_SH}, v26
    v_xor_b32 v30, 128, v29           ; u odd
    v_and_b32 v26, 12, v25
    v_bfe_u32 v31, v25, 1, 1
    v_or_b32 v26, v26, v31
    v_xor_b32 v26, v26, v27
    v_lshlrev_b32 v26, 4, v26
    v_and_b32 v31, 1, v25
    v_lshl_add_u32 v26, v31, 3, v26
    v_lshl_add_u32 v26, v24, 8, v26
    v_add_u32 v18, {L_SH}, v26
    v_xor_b32 v19, 32, v18
    v_xor_b32 v20, 128, v18
    v_xor_b32 v21, 160, v18
    v_lshlrev_b32 v31, 13, v24
    v_lshl_add_u32 v31, v25, 4, v31
    v_mul_u32_u24 v26, 1152, v24
    v_lshrrev_b32 v27, 2, v25
    v_mul_u32_u24 v27, 288, v27
    v_and_b32 v25, 3, v25
    v_lshl_add_u32 v27, v25, 4, v27
    v_add_u32 v79, v26, v27
    """)
    a(f"""
    v_bfe_u32 v32, {L}, 2, 2          ; r
    v_and_b32 v33, 3, {L}             ; c
    v_lshrrev_b32 v34, 1, v32         ; r>>1
    v_and_b32 v35, 1, v32             ; r&1
    v_lshrrev_b32 v36, 1, v13         ; gb>>1
    s_lshl_b32 s{S_T1}, s{S_W}, 2     ; 4w
    """)
    RA1 = [40, 41, 42, 43]
    RA3 = [44, 45, 46, 47]
    for mp in range(2):
        a(f"""
        v_lshl_add_u32 v37, v17, 2, v35       ; 4*(gb&1) + (r&1)
        v_add_u32 v37, {2*mp}, v37            ; 2j + (r&1)
        v_lshl_add_u32 v38, v34, 3, v37       ; rho15
        v_lshl_add_u32 v38, v36, 4, v38       ; + 16*(gb>>1)
        v_lshlrev_b32 v39, 1, v34
        v_xor_b32 v37, v37, v39               ; key
        v_lshlrev_b32 v37, 1, v37
        v_lshrrev_b32 v39, 1, v33
        v_add_u32 v39, s{S_T1}, v39           ; 4w + (c>>1)
        v_xor_b32 v37, v37, v39
        v_lshlrev_b32 v37, 4, v37
        v_lshl_add_u32 v37, v38, 8, v37
        v_and_b32 v39, 1, v33
        v_lshl_add_u32 v37, v39, 3, v37
        v_add_u32 v{RA1[2*mp]}, {L_SH}, v37
        v_xor_b32 v{RA1[2*mp+1]}, 32, v{RA1[2*mp]}
        """)
        a(f"""
        v_lshl_add_u32 v38, v17, 4, v35
        v_lshl_add_u32 v38, v36, 3, v38
        v_lshl_add_u32 v38, v34, 2, v38
        v_add_u32 v38, {2*mp}, v38
        v_lshl_add_u32 v37, v34, 1, v35
        v_lshl_add_u32 v37, v17, 2, v37       ; key
        v_lshlrev_b32 v37, 1, v37
        v_lshrrev_b32 v39, 1, v33
        v_add_u32 v39, s{S_T1}, v39
        v_xor_b32 v37, v37, v39
        v_lshlrev_b32 v37, 4, v37
        v_lshl_add_u32 v37, v38, 8, v37
        v_and_b32 v39, 1, v33
        v_lshl_add_u32 v37, v39, 3, v37
        v_add_u32 v{RA3[2*mp]}, {L_SH}, v37
        v_xor_b32 v{RA3[2*mp+1]}, 32, v{RA3[2*mp]}
        """)
    a(f"""
    v_mov_b32 v39, v79
    v_mov_b32 v32, v18
    v_mov_b32 v33, v19
    v_mov_b32 v34, v20
    v_mov_b32 v35, v21
    s_mov_b32 s{S_T2}, 0x05040100
    s_mov_b32 s{S_T3}, 0x07060302
    """)
    stages = []
    for mat in range(3):
        for kk in range(9):
            stages.append((1, mat, kk))
    for ks in range(2):
        for up in range(5):
            stages.append((3, ks, up))
    LB = [48, 64]
    TMPF = 12
    SRDS = [S_A, S_B, S_C]
    def issue_loads(n):
        kind, x, y = stages[n]
        b = LB[n % 2]
        if kind == 1:
            a(f"s_lshl_b32 s{S_T1}, s{S_H}, 8")
            a(f"s_add_u32 s{S_T1}, s{S_T1}, {y*64*8192}")
            for u in range(4):
                a(f"buffer_load_dwordx4 v[{b+4*u}:{b+4*u+3}], v31, s[{SRDS[x]}:{SRDS[x]+3}], s{S_T1} offen")
                vm.issue(("ld", n))
                if u < 3: a(f"s_add_u32 s{S_T1}, s{S_T1}, {16*8192}")
        else:
            a(f"s_mul_i32 s{S_T1}, s{S_H}, 147456")
            a(f"s_add_u32 s{S_T1}, s{S_T1}, {x*64*1152 + y*64}")
            for u in range(4):
                a(f"buffer_load_dwordx4 v[{b+4*u}:{b+4*u+3}], v39, s[{S_D}:{S_D+3}], s{S_T1} offen")
                vm.issue(("ld", n))
                if u < 3: a(f"s_add_u32 s{S_T1}, s{S_T1}, {16*1152}")
    vm.q = []
    issue_loads(0); issue_loads(1)
    for n, (kind, x, y) in enumerate(stages):
        b = LB[n % 2]
        vm.wait(("ld", n))
        for u in range(4):
            d = b + 4 * u
            if kind == 3 and y < 4:
                a(f"""
                v_perm_b32 v12, v{d+1}, v{d}, s{S_T2}
                v_perm_b32 v13, v{d+3}, v{d+2}, s{S_T2}
                v_perm_b32 v14, v{d+1}, v{d}, s{S_T3}
                v_perm_b32 v15, v{d+3}, v{d+2}, s{S_T3}
                ds_write_b64 v{32 + 2*(u%2)}, v[12:13] offset:{4096*u}
                ds_write_b64 v{33 + 2*(u%2)}, v[14:15] offset:{4096*u}
                """)
            else:
                wa = 28 if kind == 1 else (29 if u % 2 == 0 else 30)
                a(f"ds_write_b128 v{wa}, v[{d}:{d+3}] offset:{4096*u}")
        a("s_waitcnt lgkmcnt(0)")
        a("s_barrier")
        if n + 2 < len(stages): issue_loads(n + 2)
        RA = RA1 if kind == 1 else RA3
        ntiles = 2 if not (kind == 3 and y == 4) else 1
        wb = []
        for nt in range(ntiles):
            key = (1, 2 * x + nt, y) if kind == 1 else (3, 2 * y + nt, x)
            where, what = loc[key]
            if where == "reg":
                k, lo = sub(what)
            else:
                k, lo = "v", TMPF + 8 * nt
                wb.append((what, lo))
            for hb in range(2):
                for mp in range(2):
                    a(f"ds_read_b64_tr_b16 {rng(k, lo + 4*hb + 2*mp, 2)}, v{RA[2*mp+nt]} offset:{8192*hb}")
        a("s_waitcnt lgkmcnt(0)")
        for (m, lo) in wb:
            a(f"ds_write_b128 v{vWl}, v[{lo}:{lo+3}] offset:{2048*m}")
            a(f"ds_write_b128 v{vWl}, v[{lo+4}:{lo+7}] offset:{2048*m+1024}")
        a("s_barrier")
    stamp(11)
    rt(a, 1)
    a(f"""
    v_and_b32 v12, 7, {L}
    v_mul_u32_u24 v12, 1152, v12
    v_lshrrev_b32 v13, 3, {L}
    v_lshl_add_u32 v12, v13, 4, v12    ; t*1152 + (lane>>3)*16
    s_lshl_b32 s{S_T1}, s{S_W}, 8
    s_lshl_b32 s{S_T2}, s{S_W}, 11
    v_lshlrev_b32 v14, 4, {L}
    v_add_u32 v14, {L_SH}, v14
    v_add_u32 v13, s{S_T2}, v14
    s_load_dwordx2 s[{S_A}:{S_A+1}], s[0:1], 80
    s_waitcnt lgkmcnt(0)
    s_and_b32 s{S_A+1}, s{S_A+1}, 0xffff
    s_mov_b32 s{S_A+2}, 9216
    s_mov_b32 s{S_A+3}, 0x00020000
    buffer_load_dwordx4 v[16:19], v12, s[{S_A}:{S_A+3}], s{S_T1} offen
    buffer_load_dwordx4 v[20:23], v12, s[{S_A}:{S_A+3}], s{S_T1} offen offset:128
    buffer_load_dwordx4 v[24:27], v12, s[{S_A}:{S_A+3}], 0 offen offset:1024
    s_waitcnt vmcnt(0)
    ds_write_b128 v13, v[16:19]
    ds_write_b128 v13, v[20:23] offset:1024
    ds_write_b128 v14, v[24:27] offset:8192
    """)
    vm.q = []
    a(f"""
    s_waitcnt lgkmcnt(0)
    s_barrier
    s_cmp_lg_u32 s{S_W}, 0
    s_cbranch_scc1 TEAM_BAR_DONE
    v_mov_b32 v12, 1
    v_mov_b32 v13, {D_TEAMBAR*4}
    s_mov_b64 exec, 1
    buffer_atomic_add v12, v13, s[{S_DBG}:{S_DBG+3}], 0 offen
    """)
    a.label("TEAM_BAR_POLL")
    a(f"""
    buffer_load_dword v14, v13, s[{S_DBG}:{S_DBG+3}], 0 offen sc1
    s_waitcnt vmcnt(0)
    v_readfirstlane_b32 s{S_T1}, v14
    s_cmp_lt_u32 s{S_T1}, 32
    s_cbranch_scc1 TEAM_BAR_POLL
    """)
    a(f"v_mov_b32 v13, {FLG+F_KV}")
    a.label("TEAM_KV0_POLL")
    a(f"""
    buffer_load_dword v14, v13, {WSR}, 0 offen sc1
    s_waitcnt vmcnt(0)
    v_readfirstlane_b32 s{S_T1}, v14
    s_lshr_b32 s{S_T1}, s{S_T1}, s{S_H}
    s_bitcmp1_b32 s{S_T1}, 0
    s_cbranch_scc0 TEAM_KV0_POLL
    s_mov_b64 exec, -1
    """)
    a.label("TEAM_BAR_DONE")
    a("s_barrier")
    rt(a, 2)
    a(f"""
    s_mov_b32 s{S_STEP}, 0
    s_lshl_b32 s{S_T1}, s{S_H}, 13
    s_add_u32 s{S_KXO}, s{S_T1}, {KX}
    s_add_u32 s{S_KXO2}, s{S_KXO}, 4096
    s_add_u32 s{S_VXO}, s{S_T1}, {VX}
    s_lshl_b32 s{S_T1}, s{S_H}, 12
    s_add_u32 s{S_KMO}, s{S_T1}, {KM}
    s_lshl_b32 s{S_T1}, s{S_H}, 11
    s_add_u32 s{S_VMO}, s{S_T1}, {VM}
    s_lshl_b32 s{S_T1}, s{S_H}, 7
    s_add_u32 s{S_PWO}, s{S_T1}, {PART}
    s_add_u32 s{S_PW1}, s{S_PWO}, 32768
    s_mul_i32 s{S_T1}, s{S_W}, {18*4096}
    s_add_u32 s{S_PW4}, s{S_PWO}, 65536
    s_add_u32 s{S_PW4}, s{S_PW4}, s{S_T1}
    s_mov_b32 s96, 0
    s_mov_b32 s97, 0
    s_lshl_b32 s{S_JOB}, s{S_W}, 5
    s_add_u32 s{S_JOB}, s{S_JOB}, s{S_H}
    s_lshl_b32 s{S_T1}, s{S_JOB}, 12
    s_add_u32 s{S_RDO}, s{S_T1}, {PART}
    ; job decode: wj = J/18, jj = J%18 ; colbase = 144wj + (jj<16 ? 64*(jj>>3)+4*(jj&7) : 128+8*(jj-16)); astep = jj<16?2:4 ; delta = jj<16?32:2
    s_mul_i32 s{S_T1}, s{S_JOB}, 3641
    s_lshr_b32 s{S_T1}, s{S_T1}, 16          ; J/18 for J<128
    s_mul_i32 s{S_T2}, s{S_T1}, 18
    s_sub_u32 s{S_T2}, s{S_JOB}, s{S_T2}     ; jj
    s_mul_i32 s{S_T1}, s{S_T1}, 144
    s_lshr_b32 s{S_T3}, s{S_T2}, 3
    s_lshl_b32 s{S_T3}, s{S_T3}, 6
    s_and_b32 s{S_T0}, s{S_T2}, 7
    s_lshl_b32 s{S_JA}, s{S_T0}, 2
    s_lshl_b32 s{S_JD}, s{S_T0}, 3
    s_cmp_lt_u32 s{S_T2}, 16
    s_cselect_b32 s{S_T0}, s{S_JA}, s{S_JD}
    s_cselect_b32 s{S_JA}, 2, 4
    s_cselect_b32 s{S_JD}, 32, 2
    s_add_u32 s{S_T1}, s{S_T1}, s{S_T3}
    s_add_u32 s{S_JC}, s{S_T1}, s{S_T0}
    s_mov_b32 s{S_MEMW}, {MEM+9216}
    s_lshl_b32 s{S_T1}, s{S_W}, 11
    s_add_u32 s{S_MEMR}, s{S_T1}, {MEM+9216}
    s_lshl_b32 s{S_T1}, s{S_W}, 8
    s_add_u32 s{S_MEMR3}, s{S_T1}, {MEM+9216+8192}
    s_lshl_b32 s{S_T1}, s{S_H}, 4
    s_lshl_b32 s{S_T2}, s{S_W}, 2
    s_add_u32 s{S_FKM}, s{S_T1}, s{S_T2}
    s_add_u32 s{S_FKM}, s{S_FKM}, {FLG+F_KM}
    """)
    def vx_addr(dst):
        a(f"""
        v_bfe_u32 v{dst}, v{vWl}, 4, 4
        v_lshl_add_u32 v{dst}, s{S_W}, 5, v{dst}
        v_lshlrev_b32 v{dst}, 6, v{dst}
        v_bfe_u32 v{dst+1}, v{vWl}, 8, 2
        v_lshl_add_u32 v{dst}, v{dst+1}, 4, v{dst}
        """)
    def kx_load():
        a(f"buffer_load_dwordx4 v[{KXR}:{KXR+3}], v{vKX}, {WSR}, s{S_KXO} offen")
        a(f"buffer_load_dwordx4 v[{KXR+4}:{KXR+7}], v{vKX}, {WSR}, s{S_KXO2} offen")
    def vx_load(ad):
        a(f"buffer_load_dwordx4 v[{VXR}:{VXR+3}], v{ad}, {WSR}, s{S_VXO} offen")
        a(f"buffer_load_dwordx4 v[{VXR+4}:{VXR+7}], v{ad}, {WSR}, s{S_VXO} offen offset:1024")
    def zero4(r):
        a(f"ds_read_b128 v[{r}:{r+3}], v{vIDX} offset:0" if False else f"ds_read_b128 v[{r}:{r+3}], v{vZero}")
        lg.issue("zero")
    kx_load(); vx_addr(12); vx_load(12)
    a(f"""
    s_add_u32 s{S_KXO}, s{S_KXO}, {32*8192}
    s_add_u32 s{S_KXO2}, s{S_KXO2}, {32*8192}
    s_add_u32 s{S_VXO}, s{S_VXO}, {32*8192}
    """)
    for r in range(24): a(f"v_mov_b32 v{ACC[0]+r}, 0")
    a("s_waitcnt vmcnt(0)")

    def w_read(m):
        b = WB[m % 2]
        a(f"ds_read_b128 v[{b}:{b+3}], v{vWl} offset:{2048*m}"); lg.issue(("w", m))
        a(f"ds_read_b128 v[{b+4}:{b+7}], v{vWl} offset:{2048*m+1024}"); lg.issue(("w", m))
    def a_read(kk):
        b = AB[kk % 3]
        a(f"ds_read_b128 v[{b}:{b+3}], v{vSh} offset:{1024*kk}"); lg.issue(("a", kk))

    a.label("TEAM_STEP")
    lg.q = []
    stamp(0)
    a_read(0); w_read(0); a_read(1); w_read(1); a_read(2)
    def smf(T, kk):
        where, what = loc[(1, T, kk)]
        ab = AB[kk % 3]
        need = [t for t in (("a", kk), ("w", what) if where == "lds" else None) if t and lg.has(t)]
        if need:
            last = max(need, key=lambda t: max(i for i, x in enumerate(lg.q) if x == t))
            lg.wait(last)
        b = vr(WB[what % 2], 8) if where == "lds" else what
        a(f"v_smfmac_f32_16x16x64_bf16 v[{ACC[T]}:{ACC[T]+3}], v[{ab}:{ab+3}], {b}, v{vIDX}")
        if where == "lds" and what + 2 < 18:
            w_read(what + 2)
    for n, (T, kk) in enumerate(order[:48]):
        smf(T, kk)
        if kk < 6 and T == 5: a_read(kk + 3)
    stamp(1)
    q0, q1, k0, k1 = ACC[0:4]
    side = []
    S = side.append
    for (qq, kq, off) in ((q0, k0, 0), (q1, k1, 128)):
        S(f"v_add_f32 v{qq}, v{qq}, v{qq+1}")
        S(f"v_add_f32 v{qq+2}, v{qq+2}, v{qq+3}")
        S(f"v_cvt_pk_bf16_f32 v{qq}, v{qq}, v{qq+2}")
        S(f"v_add_f32 v{kq}, v{kq}, v{kq+1}")
        S(f"v_add_f32 v{kq+2}, v{kq+2}, v{kq+3}")
        S(f"v_cvt_pk_bf16_f32 v{kq}, v{kq}, v{kq+2}")
        S(("ds", f"ds_write2_b32 v{vZw}, v{kq}, v{qq} offset0:{off} offset1:{off+4}", "zw"))
    Z = q1
    S(("ds", f"ds_read_b64_tr_b16 v[{Z}:{Z+1}], v{vZr}", "z"))
    S(("ds", f"ds_read_b64_tr_b16 v[{Z+2}:{Z+3}], v{vZr} offset:128", "z"))
    def emit_side(n):
        k = 0
        while side and k < n:
            it = side.pop(0)
            if isinstance(it, str): a(it)
            elif it[0] == "ds": a(it[1]); lg.issue(it[2])
            k += 1
    cnt = [0, 2, 4, 5, 5, 0]
    for n, (T, kk) in enumerate(order[48:]):
        smf(T, kk)
        emit_side(cnt[n])
    emit_side(1000)
    v0_, v1_ = ACC[4], ACC[5]
    VMB = 48
    T0, T1, T2 = q0, k0, k1
    vx_addr(60)
    a(f"""
    v_lshrrev_b32 v61, 2, v60
    v_mov_b32 v{VMB+1}, 0
    v_mov_b32 v{VMB+3}, 0
    """)
    lg.wait("z")
    a(f"""
    v_mfma_f32_16x16x32_bf16 v[{T1}:{T1+3}], v[{KXR}:{KXR+3}], v[{Z}:{Z+3}], 0
    v_mfma_f32_16x16x32_bf16 v[{T2}:{T2+3}], v[{KXR+4}:{KXR+7}], v[{Z}:{Z+3}], 0
    v_mfma_f32_16x16x32_bf16 v[{T0}:{T0+3}], v[{Z}:{Z+3}], v[{Z}:{Z+3}], 0
    v_add_f32 v{v0_}, v{v0_}, v{v0_+1}
    v_add_f32 v{v0_+2}, v{v0_+2}, v{v0_+3}
    v_add_f32 v{v1_}, v{v1_}, v{v1_+1}
    v_add_f32 v{v1_+2}, v{v1_+2}, v{v1_+3}
    v_cvt_pk_bf16_f32 v{VMB}, v{v0_}, v{v0_+2}
    v_cvt_pk_bf16_f32 v{VMB+2}, v{v1_}, v{v1_+2}
    ds_write_b128 v{vSw}, v[{T1}:{T1+3}] offset:768
    ds_write_b128 v{vSw}, v[{T2}:{T2+3}] offset:1280
    ds_write_b128 v{vSw}, v[{T0}:{T0+3}]
    buffer_store_dwordx4 v[{Z}:{Z+3}], v{vKX}, {WSR}, s{S_KMO} offen sc1
    """)
    kx_load()
    stamp(2)
    lg.wait_all()
    a("s_barrier")
    stamp(3)
    X = 12; TZ = 28
    for w2 in range(4):
        a(f"ds_read_b128 v[{X+4*w2}:{X+4*w2+3}], v{vSrX} offset:{L_REG*w2}"); lg.issue(("x", w2))
        a(f"ds_read_b64 v[{TZ+2*w2}:{TZ+2*w2+1}], v{vSr0} offset:{L_REG*w2}"); lg.issue(("x", w2))
    A3 = [36, 40, 44, 12, 16, 20, 24, 48, 52]
    for U in range(3): zero4(A3[U])
    a(f"""
    buffer_store_dword v{VMB}, v61, {WSR}, s{S_VMO} offen sc1
    buffer_store_dword v{VMB+2}, v61, {WSR}, s{S_VMO} offen offset:256 sc1
    """)
    lg.wait(("x", 1))
    a(f"""
    v_pk_add_f32 v[{X}:{X+1}], v[{X}:{X+1}], v[{X+4}:{X+5}]
    v_pk_add_f32 v[{X+2}:{X+3}], v[{X+2}:{X+3}], v[{X+6}:{X+7}]
    v_pk_add_f32 v[{TZ}:{TZ+1}], v[{TZ}:{TZ+1}], v[{TZ+2}:{TZ+3}]
    """)
    lg.wait(("x", 3))
    a(f"""
    v_pk_add_f32 v[{X+8}:{X+9}], v[{X+8}:{X+9}], v[{X+12}:{X+13}]
    v_pk_add_f32 v[{X+10}:{X+11}], v[{X+10}:{X+11}], v[{X+14}:{X+15}]
    v_pk_add_f32 v[{TZ+4}:{TZ+5}], v[{TZ+4}:{TZ+5}], v[{TZ+6}:{TZ+7}]
    v_pk_add_f32 v[{X}:{X+1}], v[{X}:{X+1}], v[{X+8}:{X+9}]
    v_pk_add_f32 v[{X+2}:{X+3}], v[{X+2}:{X+3}], v[{X+10}:{X+11}]
    v_pk_add_f32 v[{X+4}:{X+5}], v[{TZ}:{TZ+1}], v[{TZ+4}:{TZ+5}]
    """)
    Mx = X + 6; Tm = X + 7
    PX = 28; PM = 32
    O = 52
    a(f"""
    v_max3_f32 v{Mx}, v{X}, v{X+1}, v{X+2}
    v_max3_f32 v{Tm}, v{X+3}, v{X+4}, v{X+5}
    v_max_f32 v{Mx}, v{Mx}, v{Tm}
    """)
    zero4(20); zero4(24)
    a(f"""
    v_max_f32_dpp v{Mx}, v{Mx}, v{Mx} row_ror:8 row_mask:0xf bank_mask:0xf
    v_mov_b32 v{Tm}, v{Mx}
    v_mov_b32 v{PM+1}, 0
    s_nop 0
    v_permlane16_swap_b32 v{Tm}, v{Mx}
    v_max_f32 v{Mx}, v{Mx}, v{Tm}
    v_mov_b32 v{Tm}, v{Mx}
    s_nop 1
    v_permlane32_swap_b32 v{Tm}, v{Mx}
    v_max_f32 v{Mx}, v{Mx}, v{Tm}
    v_mul_f32 v{Mx}, s{S_CEXP}, v{Mx}
    """)
    for r in range(6): a(f"v_fma_f32 v{X+r}, v{X+r}, s{S_CEXP}, -v{Mx}")
    for r in range(6): a(f"v_exp_f32 v{X+r}, v{X+r}")
    a(f"""
    v_cvt_pk_bf16_f32 v{PM}, v{X+4}, v{X+5}
    v_cvt_pk_bf16_f32 v{PX}, v{X}, v{X+1}
    v_cvt_pk_bf16_f32 v{PX+1}, v{X+2}, v{X+3}
    v_add_f32 v{Mx}, v{X+4}, v{X+5}
    v_mfma_f32_16x16x16_bf16 v[{O}:{O+3}], v[{VMB}:{VMB+1}], v[{PM}:{PM+1}], 0
    v_mov_b32_dpp v{PX+2}, v{PX} row_ror:8 row_mask:0xf bank_mask:0xf
    v_mov_b32_dpp v{PX+3}, v{PX+1} row_ror:8 row_mask:0xf bank_mask:0xf
    v_mfma_f32_16x16x16_bf16 v[{O+4}:{O+7}], v[{VMB+2}:{VMB+3}], v[{PM}:{PM+1}], 0
    v_add_f32 v{Tm}, v{X}, v{X+1}
    v_fma_f32 v{Mx}, v{Mx}, 0.5, v{Tm}
    v_add_f32 v{Tm}, v{X+2}, v{X+3}
    v_add_f32 v{Mx}, v{Mx}, v{Tm}
    v_mfma_f32_16x16x32_bf16 v[{O}:{O+3}], v[{VXR}:{VXR+3}], v[{PX}:{PX+3}], v[{O}:{O+3}]
    v_mfma_f32_16x16x32_bf16 v[{O+4}:{O+7}], v[{VXR+4}:{VXR+7}], v[{PX}:{PX+3}], v[{O+4}:{O+7}]
    v_add_f32_dpp v{Mx}, v{Mx}, v{Mx} row_ror:8 row_mask:0xf bank_mask:0xf
    v_mov_b32 v{Tm}, v{Mx}
    """)
    zero4(12); zero4(48)
    a(f"""
    v_permlane16_swap_b32 v{Tm}, v{Mx}
    v_add_f32 v{Mx}, v{Mx}, v{Tm}
    v_mov_b32 v{Tm}, v{Mx}
    """)
    vx_load(60)
    a(f"""
    v_permlane32_swap_b32 v{Tm}, v{Mx}
    v_add_f32 v{Mx}, v{Mx}, v{Tm}
    v_rcp_f32 v{Mx}, v{Mx}
    s_cmp_eq_u32 s{S_STEP}, 63
    v_mov_b32 v{Tm}, v{Mx}
    """)
    for p in range(4): a(f"v_pk_mul_f32 v[{O+2*p}:{O+2*p+1}], v[{O+2*p}:{O+2*p+1}], v[{Mx}:{Tm}]")
    OP = 60
    for p in range(4): a(f"v_cvt_pk_bf16_f32 v{OP+p}, v{O+2*p}, v{O+2*p+1}")
    a(f"ds_write_b128 v{vSw}, v[{OP}:{OP+3}] offset:256")
    zero4(16); zero4(52)
    stamp(4)
    a("s_waitcnt lgkmcnt(0)")
    a("s_barrier")
    stamp(5)
    AO = 56
    a(f"ds_read_b128 v[{AO}:{AO+3}], v{vOr}")
    a(f"ds_read_b128 v[{AO+4}:{AO+7}], v{vOr} offset:{2*L_REG}")
    a("s_cbranch_scc1 TEAM_LAST")
    a(f"""
    v_bfe_u32 v28, v{vWl}, 7, 1
    v_lshlrev_b32 v28, 12, v28
    v_bfe_u32 v29, v{vWl}, 6, 1
    v_lshl_add_u32 v28, v29, 6, v28
    v_bfe_u32 v29, v{vWl}, 8, 2
    v_lshl_add_u32 v28, v29, 4, v28
    v_bfe_u32 v29, v{vWl}, 5, 1
    v_lshl_add_u32 v28, v29, 3, v28
    v_bfe_u32 v29, v{vWl}, 4, 1
    v_lshl_add_u32 v28, v29, 30, v28
    """)
    a("s_waitcnt lgkmcnt(0)" if dbg_time else "s_waitcnt lgkmcnt(1)")
    PWS = [S_PWO, S_PW1]
    def pair_out(pp):
        Ua, Ub = A3[2 * pp], A3[2 * pp + 1]
        o = (32 if pp < 2 else 40) + 2 * (pp % 2)
        r = [f"v_add_f32 v{Ua}, v{Ua}, v{Ua+1}",
             f"v_add_f32 v{Ua+2}, v{Ua+2}, v{Ua+3}",
             f"v_add_f32 v{Ub}, v{Ub}, v{Ub+1}",
             f"v_add_f32 v{Ub+2}, v{Ub+2}, v{Ub+3}",
             f"v_cvt_pk_bf16_f32 v{o}, v{Ua}, v{Ub}",
             f"v_cvt_pk_bf16_f32 v{o+1}, v{Ua+2}, v{Ub+2}"]
        if pp % 2 == 1:
            r.append(f"buffer_store_dwordx4 v[{o-2}:{o+1}], v{vPW}, {WSR}, s{PWS[pp//2]} offen")
        return r
    U8 = A3[8]
    t8 = [f"v_add_f32 v{U8}, v{U8}, v{U8+1}",
          f"v_add_f32 v{U8+1}, v{U8+2}, v{U8+3}",
          f"s_add_u32 s{S_STEP}, s{S_STEP}, 1",
          f"v_mov_b32_dpp v{U8+2}, v{U8} quad_perm:[1,0,3,2] row_mask:0xf bank_mask:0xf",
          f"v_mov_b32_dpp v{U8+3}, v{U8+1} quad_perm:[1,0,3,2] row_mask:0xf bank_mask:0xf",
          f"v_cvt_pk_bf16_f32 v{U8}, v{U8}, v{U8+2}",
          f"v_cvt_pk_bf16_f32 v{U8+1}, v{U8+1}, v{U8+3}",
          f"buffer_store_dwordx2 v[{U8}:{U8+1}], v28, {WSR}, s{S_PW4} offen"]
    pend = []
    first = True
    seq = [8, 0, 1, 2, 3, 4, 5, 6, 7]
    for n, U in enumerate(seq):
        a(f"v_smfmac_f32_16x16x64_bf16 v[{A3[U]}:{A3[U]+3}], v[{AO}:{AO+3}], {loc[(3,U,0)][1]}, v{vIDX}")
        if first: a("s_waitcnt lgkmcnt(0)"); first = False
        for _ in range(2):
            if pend: a(pend.pop(0))
        a(f"v_smfmac_f32_16x16x64_bf16 v[{A3[U]}:{A3[U]+3}], v[{AO+4}:{AO+7}], {loc[(3,U,1)][1]}, v{vIDX}")
        for _ in range(2):
            if pend: a(pend.pop(0))
        if n == 2: pend += t8
        if U % 2 == 1 and 3 <= U < 8: pend += pair_out((U - 3) // 2)
    book = f"""s_add_u32 s{S_KMO}, s{S_KMO}, {32*4096}
    s_add_u32 s{S_VMO}, s{S_VMO}, {32*2048}
    s_add_u32 s{S_KXO}, s{S_KXO}, {32*8192}
    s_add_u32 s{S_KXO2}, s{S_KXO2}, {32*8192}
    s_add_u32 s{S_VXO}, s{S_VXO}, {32*8192}""".split("\n")
    for x in pend: a(x)
    for x in book: a(x)
    for x in pair_out(3): a(x)
    stamp(6)
    RL = 44
    P0, P1, P2, P3 = 38, 39, 46, 47
    a(f"""
    s_mov_b32 s{S_T2}, {PART_SLOT}
    s_sub_u32 s{S_T3}, 0, s{S_T2}
    s_bitcmp1_b32 s{S_STEP}, 0
    s_cselect_b32 s{S_T0}, s{S_T2}, s{S_T3}
    s_add_u32 s{S_PWO}, s{S_PWO}, s{S_T0}
    s_add_u32 s{S_PW1}, s{S_PW1}, s{S_T0}
    s_add_u32 s{S_PW4}, s{S_PW4}, s{S_T0}
    v_and_b32 v{P0}, 0x3f0, v{vWl}
    v_and_b32 v{P1}, 0xf0, v{P0}
    s_lshl_b32 s{S_T2}, s{S_W}, 8
    s_lshl_b32 s{S_T3}, s{S_W}, 11
    s_add_u32 s{S_T3}, s{S_T3}, {L_SH}
    s_add_u32 s{S_T2}, s{S_T2}, {L_SH+8192}
    v_add_u32 v{P2}, s{S_T3}, v{P0}
    v_add_u32 v{P3}, s{S_T2}, v{P1}
    s_cmp_lt_u32 s{S_W}, 2
    s_cselect_b32 s{S_TCH}, s{S_KXO}, s{S_VXO}
    s_and_b32 s{S_T2}, s{S_W}, 1
    s_lshl_b32 s{S_T2}, s{S_T2}, 12
    s_add_u32 s{S_TCH}, s{S_TCH}, s{S_T2}
    s_cmp_ge_u32 s{S_JOB}, 72
    s_cbranch_scc1 TEAM_NOJOB
    """)
    SEL = 28
    a(f"""
    v_and_b32 v{RL}, 0x70, v{vWl}
    v_bfe_u32 v{RL+1}, v{vWl}, 7, 3
    v_lshl_add_u32 v{RL}, v{RL+1}, 9, v{RL}
    v_and_b32 v{RL+1}, 16, v{vWl}
    v_mov_b32 v36, 0x3f80
    v_lshlrev_b32 v{RL+1}, v{RL+1}, v36
    v_bfe_u32 v36, v{vWl}, 5, 3
    v_cmp_eq_u32 vcc, 0, v36
    v_cmp_eq_u32 s[98:99], 1, v36
    v_cmp_eq_u32 s[100:101], 2, v36
    v_cndmask_b32 v{SEL}, 0, v{RL+1}, vcc
    v_cmp_eq_u32 vcc, 3, v36
    v_cndmask_b32 v{SEL+1}, 0, v{RL+1}, s[98:99]
    v_cndmask_b32 v{SEL+2}, 0, v{RL+1}, s[100:101]
    v_cndmask_b32 v{SEL+3}, 0, v{RL+1}, vcc
    """)
    def w1_loads(b):
        if dbg_time: a("s_add_u32 s96, s96, 1")
        for hh in range(4):
            a(f"buffer_load_dwordx4 v[{b+4*hh}:{b+3+4*hh}], v{RL}, {WSR}, s{S_RDO} offen offset:{128*hh} sc1")
    D = 32
    def w1_reduce(b, after):
        for hh in range(4):
            a(f"s_waitcnt vmcnt({after + 3 - hh})")
            a(f"v_mfma_f32_16x16x32_bf16 v[{D}:{D+3}], v[{SEL}:{SEL+3}], v[{b+4*hh}:{b+3+4*hh}], {'0' if hh == 0 else vr(D,4)}")
        for r in range(4):
            a(f"v_add_f32_dpp v{D+r}, v{D+r}, v{D+r} row_ror:8 row_mask:0xf bank_mask:0xf")
        a(f"v_cvt_pk_bf16_f32 v{D+4}, v{D}, v{D+1}")
        a(f"v_cvt_pk_bf16_f32 v{D+5}, v{D+2}, v{D+3}")
        a(f"v_cmp_u_f32 vcc, v{D}, v{D+2}")
        a(f"s_cbranch_vccz TEAM_W1_OK")
        a(f"v_max3_u32 v{D}, v{b}, v{b+1}, v{b+2}")
        for k in range(b + 3, b + 15, 2): a(f"v_max3_u32 v{D}, v{D}, v{k}, v{k+1}")
        a(f"v_max_u32 v{D}, v{D}, v{b+15}")
        a(f"v_cmp_eq_u32 vcc, -1, v{D}")
        a(f"s_cbranch_vccz TEAM_W1_OK")
    SA, SB = 12, 48
    for _ in range(W1_PRE): a("s_nop 7")
    w1_loads(SA)
    a(f"""
    v_bfe_u32 v{RL+1}, v{vWl}, 6, 1
    v_mul_u32_u24 v{RL+1}, s{S_JA}, v{RL+1}
    v_bfe_u32 v36, v{vWl}, 8, 1
    v_mul_u32_u24 v36, s{S_JD}, v36
    v_add3_u32 v{RL+1}, v{RL+1}, v36, s{S_JC}
    v_lshrrev_b32 v36, 3, v{RL+1}
    v_and_b32 v{RL+1}, 7, v{RL+1}
    v_lshlrev_b32 v{RL+1}, 1, v{RL+1}
    v_lshl_add_u32 v{RL+1}, v36, 7, v{RL+1}
    v_bfe_u32 v36, v{vWl}, 4, 2
    v_lshl_add_u32 v{RL+1}, v36, 5, v{RL+1}
    v_and_b32 v36, 0x280, v{vWl}
    v_lshl_add_u32 v{RL+1}, v36, 21, v{RL+1}
    v_mov_b32 v40, -1
    v_mov_b32 v41, -1
    v_mov_b32 v42, -1
    v_mov_b32 v43, -1
    """)
    for _ in range(W1_GAP): a("s_nop 7")
    a.label("TEAM_W1")
    w1_loads(SB)
    w1_reduce(SA, 4)
    w1_loads(SA)
    w1_reduce(SB, 4)
    a("s_branch TEAM_W1")
    a.label("TEAM_W1_OK")
    stamp(7)
    a(f"""
    buffer_store_dword v{D+4}, v{RL+1}, {WSR}, s{S_MEMW} offen
    buffer_store_dword v{D+5}, v{RL+1}, {WSR}, s{S_MEMW} offen offset:16
    s_waitcnt vmcnt(2)
    """)
    stamp(8)
    a("s_branch TEAM_W2PRE")
    a.label("TEAM_NOJOB")
    if NJ_PRE: a(f"s_sleep {NJ_PRE}")
    a(f"""
    s_cmp_lg_u32 s{S_W}, 3
    s_cbranch_scc1 TEAM_W2PRE
    s_add_u32 s{S_T1}, s{S_STEP}, 1
    s_and_b32 s{S_T2}, s{S_T1}, 3
    s_cmp_lg_u32 s{S_T2}, 0
    s_cbranch_scc1 TEAM_W2PRE
    s_cmp_ge_u32 s{S_T1}, 64
    s_cbranch_scc1 TEAM_W2PRE
    s_lshl_b32 s{S_T1}, s{S_T1}, 4
    v_mov_b32 v12, {FLG+F_KV}
    """)
    a.label("TEAM_KVP")
    a(f"""
    buffer_load_dword v13, v12, {WSR}, s{S_T1} offen sc1
    s_waitcnt vmcnt(0)
    v_readfirstlane_b32 s{S_T2}, v13
    s_lshr_b32 s{S_T2}, s{S_T2}, s{S_H}
    s_bitcmp1_b32 s{S_T2}, 0
    s_cbranch_scc0 TEAM_KVP
    """)
    a.label("TEAM_W2PRE")
    def w2_loads(b):
        if dbg_time: a("s_add_u32 s97, s97, 1")
        a(f"""
        buffer_load_dwordx4 v[{b}:{b+3}], v{P0}, {WSR}, s{S_MEMR} offen sc1
        buffer_load_dwordx4 v[{b+4}:{b+7}], v{P0}, {WSR}, s{S_MEMR} offen offset:1024 sc1
        buffer_load_dwordx4 v[{b+8}:{b+11}], v{P1}, {WSR}, s{S_MEMR3} offen sc1
        """)
    def w2_check(b):
        a(f"""
        s_waitcnt vmcnt(3)
        ds_write_b128 v{P2}, v[{b}:{b+3}]
        ds_write_b128 v{P2}, v[{b+4}:{b+7}] offset:1024
        ds_write_b128 v{P3}, v[{b+8}:{b+11}]
        v_max3_u32 v36, v{b}, v{b+1}, v{b+2}
        v_max3_u32 v37, v{b+3}, v{b+4}, v{b+5}
        v_max3_u32 v36, v36, v{b+6}, v{b+7}
        v_max3_u32 v37, v37, v{b+8}, v{b+9}
        v_max3_u32 v36, v36, v{b+10}, v{b+11}
        v_max_u32 v36, v36, v37
        v_cmp_eq_u32 vcc, -1, v36
        s_cbranch_vccz TEAM_W2_OK
        """)
    for _ in range(W2_PRE): a("s_nop 7")
    w2_loads(SA)
    lg.q = []
    for r in (0, 1, 2): zero4(ACC[r])
    a(f"""
    s_add_u32 s{S_MEMW}, s{S_MEMW}, 9216
    v_mov_b32 v45, s{S_FKM}
    """)
    for _ in range(W2_GAP): a("s_nop 7")
    a.label("TEAM_W2")
    w2_loads(SB)
    w2_check(SA)
    w2_loads(SA)
    w2_check(SB)
    a("s_branch TEAM_W2")
    a.label("TEAM_W2_OK")
    stamp(9)
    if dbg_time:
        a(f"""
        s_waitcnt lgkmcnt(0)
        s_lshl_b32 s{S_T1}, s{S_STEP}, 7
        s_lshl_b32 s{S_T2}, s{S_H}, 2
        s_add_u32 s{S_T1}, s{S_T1}, s{S_T2}
        s_add_u32 s{S_T1}, s{S_T1}, s{S_W}
        s_lshl_b32 s{S_T1}, s{S_T1}, 6
        s_add_u32 s{S_T1}, s{S_T1}, 0x7000000
        s_waitcnt vmcnt(0)
        """)
        for i in range(12):
            a(f"v_writelane_b32 v36, s{66+2*i}, {i}")
        a(f"v_writelane_b32 v36, s96, 12")
        a(f"v_writelane_b32 v36, s97, 13")
        a(f"v_bfe_u32 v37, v{vWl}, 2, 8")
        a(f"s_mov_b64 exec, 0xffff")
        a(f"buffer_store_dword v36, v37, {WSR}, s{S_T1} offen")
        a(f"s_mov_b64 exec, -1")
    if RT:
        a("s_waitcnt vmcnt(0)")
        rt(a, 16, S_STEP)
    a(f"""
    v_lshlrev_b32 v{P0}, 2, v{P0}
    v_mov_b32 v36, s{S_STEP}
    s_add_u32 s{S_MEMR}, s{S_MEMR}, 9216
    s_add_u32 s{S_MEMR3}, s{S_MEMR3}, 9216
    s_cmp_ge_u32 s{S_JOB}, 72
    s_waitcnt lgkmcnt(0)
    s_barrier
    buffer_load_dword v{vLane}, v{P0}, {WSR}, s{S_TCH} offen
    buffer_store_dword v36, v45, {WSR}, 0 offen sc1
    s_waitcnt vmcnt(2)
    s_cbranch_scc1 TEAM_NORESET
    """)
    for hh in range(4):
        a(f"buffer_store_dwordx4 v[40:43], v{RL}, {WSR}, s{S_RDO} offen offset:{128*hh}")
    a.label("TEAM_NORESET")
    zero4(ACC[3]); zero4(ACC[4]); zero4(ACC[5])
    a(f"s_add_u32 s{S_RDO}, s{S_RDO}, s{S_T0}")
    a("s_branch TEAM_STEP")
    a.label("TEAM_LAST")
    rt(a, 3)
    a(f"""
    s_waitcnt vmcnt(0) lgkmcnt(0)
    v_mov_b32 v28, 64
    v_mov_b32 v29, s{S_FKM}
    buffer_store_dword v28, v29, {WSR}, 0 offen sc1
    s_endpgm
    """)
```

```python
import sys
from asmlib import *
from layout import *
from team import *
from qkv import *
from svc import *
from s4 import *

NAME = "gated_mix__ssm_conv_s4__memory_aug_recurrent_mem_tr__prompt"

def srd(a, s, karg, nbytes):
    a(f"s_load_dwordx2 s[{s}:{s+1}], s[0:1], {karg}")
def srd_fin(a, s, nbytes):
    a(f"s_and_b32 s{s+1}, s{s+1}, 0xffff")
    a(f"s_mov_b32 s{s+2}, {nbytes}")
    a(f"s_mov_b32 s{s+3}, 0x00020000")

def prologue(a):
    a(f"""
    s_cmp_ge_u32 s2, 256
    s_cbranch_scc1 EXIT
    s_load_dwordx2 s[{S_WS}:{S_WS+1}], s[0:1], 152
    s_load_dwordx2 s[{S_DBG}:{S_DBG+1}], s[0:1], 144
    s_load_dwordx2 s[{S_A}:{S_A+1}], s[0:1], 88
    s_load_dwordx2 s[{S_B}:{S_B+1}], s[0:1], 96
    s_load_dwordx2 s[{S_C}:{S_C+1}], s[0:1], 104
    s_load_dwordx2 s[{S_D}:{S_D+1}], s[0:1], 112
    s_load_dwordx2 s[{S_OUT}:{S_OUT+1}], s[0:1], 136
    v_lshrrev_b32 v1, 6, v0
    v_readfirstlane_b32 s{S_W}, v1
    s_getreg_b32 s{S_T0}, hwreg(HW_REG_XCC_ID)
    s_and_b32 s{S_T0}, s{S_T0}, 15
    s_waitcnt lgkmcnt(0)
    """)
    srd_fin(a, S_WS, WS_SIZE); srd_fin(a, S_DBG, 256)
    for s in (S_A, S_B, S_C, S_D): srd_fin(a, s, 4718592)
    srd_fin(a, S_OUT, 2359296)
    a(f"""
    s_cmp_lg_u32 s2, 0
    s_cbranch_scc1 NOINIT
    v_mov_b32 v4, 0
    v_mov_b32 v5, 0
    v_mov_b32 v6, 0
    v_mov_b32 v7, 0
    v_lshlrev_b32 v1, 4, v0
    """)
    for u in range(FLG_BYTES // 4096):
        a(f"s_mov_b32 s{S_T1}, {FLG + 4096*u}")
        a(f"buffer_store_dwordx4 v[4:7], v1, s[{S_WS}:{S_WS+3}], s{S_T1} offen sc1")
    a(f"""
    s_waitcnt vmcnt(0)
    s_barrier
    v_mov_b32 v1, 1
    v_mov_b32 v2, {D_INIT*4}
    buffer_store_dword v1, v2, s[{S_DBG}:{S_DBG+3}], 0 offen sc1
    """)
    a.label("NOINIT")
    a(f"""
    s_cmp_lg_u32 s{S_W}, 0
    s_cbranch_scc1 ROLE_WAIT
    s_mov_b64 exec, 1
    v_mov_b32 v1, 1
    s_lshl_b32 s{S_T1}, s{S_T0}, 2
    v_mov_b32 v2, s{S_T1}
    buffer_atomic_add v1, v2, s[{S_DBG}:{S_DBG+3}], 0 offen sc0
    s_waitcnt vmcnt(0)
    v_readfirstlane_b32 s{S_H}, v1
    s_add_u32 s{S_T0}, s{S_T0}, 1           ; xcc+1
    v_mov_b32 v2, {D_CHOSEN*4}
    s_cmp_lg_u32 s{S_H}, 31
    s_cbranch_scc1 ROLE_NOCAS
    v_mov_b32 v4, s{S_T0}
    v_mov_b32 v5, 0
    buffer_atomic_cmpswap v[4:5], v2, s[{S_DBG}:{S_DBG+3}], 0 offen
    """)
    a.label("ROLE_NOCAS")
    a.label("ROLE_POLL")
    a(f"""
    buffer_load_dwordx4 v[4:7], v2, s[{S_DBG}:{S_DBG+3}], 0 offen sc1
    s_waitcnt vmcnt(0)
    v_readfirstlane_b32 s{S_T1}, v4
    v_readfirstlane_b32 s{S_T2}, v6
    s_cmp_eq_u32 s{S_T1}, 0
    s_cbranch_scc1 ROLE_POLL
    s_cmp_eq_u32 s{S_T2}, 0
    s_cbranch_scc1 ROLE_POLL
    s_mov_b32 s{S_T2}, 0
    s_cmp_lg_u32 s{S_T1}, s{S_T0}
    s_cbranch_scc1 ROLE_WORKER
    s_cmp_ge_u32 s{S_H}, 32
    s_cbranch_scc1 ROLE_WORKER
    s_mov_b32 s{S_T2}, 1                    ; team
    s_branch ROLE_SET
    """)
    a.label("ROLE_WORKER")
    a(f"v_mov_b32 v2, 0")
    a.label("ROLE_MASK")
    a(f"""
    buffer_load_dwordx4 v[4:7], v2, s[{S_DBG}:{S_DBG+3}], 0 offen sc1
    buffer_load_dwordx4 v[8:11], v2, s[{S_DBG}:{S_DBG+3}], 0 offen offset:16 sc1
    buffer_load_dwordx4 v[12:15], v2, s[{S_DBG}:{S_DBG+3}], 0 offen offset:32 sc1
    buffer_load_dwordx4 v[16:19], v2, s[{S_DBG}:{S_DBG+3}], 0 offen offset:48 sc1
    s_waitcnt vmcnt(0)
    s_mov_b32 s40, 0                        ; total
    s_mov_b32 s44, 0
    """)
    for k in range(16):
        a(f"""
        v_readfirstlane_b32 s41, v{4+k}
        s_add_u32 s40, s40, s41
        s_cmp_eq_u32 s{S_T1}, {k+1}
        s_cselect_b32 s42, 32, 0
        s_sub_u32 s41, s41, s42
        s_cmp_gt_u32 s{S_T0}, {k+1}
        s_cselect_b32 s41, s41, 0
        s_add_u32 s44, s44, s41
        """)
    a(f"""
    s_cmp_lg_u32 s40, 256
    s_cbranch_scc1 ROLE_MASK
    s_cmp_eq_u32 s{S_T1}, s{S_T0}
    s_cselect_b32 s42, 32, 0
    s_sub_u32 s{S_H}, s{S_H}, s42
    s_add_u32 s{S_H}, s{S_H}, s44
    """)
    a.label("ROLE_SET")
    a(f"""
    v_mov_b32 v4, s{S_T2}
    v_mov_b32 v5, s{S_H}
    v_mov_b32 v3, 0
    ds_write_b64 v3, v[4:5]
    s_waitcnt lgkmcnt(0)
    s_mov_b64 exec, -1
    """)
    a.label("ROLE_WAIT")
    a(f"""
    s_barrier
    v_mov_b32 v3, 0
    ds_read_b64 v[4:5], v3
    s_waitcnt lgkmcnt(0)
    v_readfirstlane_b32 s{S_T2}, v4
    v_readfirstlane_b32 s{S_H}, v5
    s_barrier
    s_cmp_eq_u32 s{S_T2}, 1
    s_cbranch_scc1 TEAM
    """)

def build(test_team_only=True):
    a = Asm()
    a.raw(open("cdna_kernels/%s.s.ref" % NAME).read().split("; Override")[0].rstrip())
    a.raw("; @launch grid=(256,1,1) block=(256,1,1) lds=163840")
    a.raw('.amdgcn_target "amdgcn-amd-amdhsa--gfx950"\n.text\n.globl %s_kernel\n.p2align 8\n.type %s_kernel,@function' % (NAME, NAME))
    a.label(NAME + "_kernel")
    prologue(a)
    rt(a, 4)
    gen_qkv(a)
    rt(a, 5)
    gen_gate(a)
    gen_s4(a)
    rt(a, 6)
    a(f"""
    s_cmp_ge_u32 s{S_RANK}, {ATT0}
    s_cbranch_scc1 ATT
    """)
    gen_oproj(a)
    gen_attn(a)
    a.label("EXIT")
    a("s_endpgm")
    gen_team(a, dbg_time=('--time' in sys.argv))
    a.raw('''.section .rodata,"a"
.p2align 6
.amdhsa_kernel %s_kernel
  .amdhsa_next_free_vgpr 512
  .amdhsa_next_free_sgpr 102
  .amdhsa_accum_offset 256
  .amdhsa_group_segment_fixed_size 0
  .amdhsa_kernarg_size 160
  .amdhsa_user_sgpr_count 2
  .amdhsa_user_sgpr_kernarg_segment_ptr 1
  .amdhsa_system_sgpr_workgroup_id_x 1
.end_amdhsa_kernel''' % NAME)
    return a.render()

if __name__ == "__main__":
    out = sys.argv[1] if len(sys.argv) > 1 else "cdna_kernels/%s.s" % NAME
    open(out, "w").write(build())
    print("wrote", out)
```

```python
from asmlib import *
from layout import *

class Q:
    def __init__(self, a, name, maxc):
        self.a = a; self.name = name; self.maxc = maxc; self.q = []
    def issue(self, tag):
        self.q.append(tag)
    def wait(self, tag):
        if tag not in self.q: return
        idx = max(i for i, t in enumerate(self.q) if t == tag)
        n = len(self.q) - 1 - idx
        assert n <= self.maxc, (self.name, tag, n)
        self.a(f"s_waitcnt {self.name}({n})")
        self.q = self.q[idx + 1:]
    def wait_all(self):
        self.a(f"s_waitcnt {self.name}(0)")
        self.q = []
    def has(self, tag):
        return tag in self.q

S_WS = 4; S_DBG = 8; S_A = 12; S_B = 16; S_C = 20; S_D = 24; S_OUT = 28
S_W = 32
S_H = 33
S_STEP = 34
S_T0 = 35; S_T1 = 36; S_T2 = 37; S_T3 = 38
S_MHG = 40
S_CEXP = 50
S_KXO = 52; S_VXO = 53; S_KMO = 54; S_VMO = 55; S_PWO = 56; S_RDO = 57; S_MEMW = 58; S_MEMR = 59
S_JOB = 60; S_FKM = 61; S_KXO2 = 62; S_MEMR3 = 63
S_PW1 = 42; S_PW2 = 43; S_PW3 = 44; S_PW4 = 45
OOB = 0x7ff00000
import sys
RT = '--rt' in sys.argv
DBGT = 0x7800000
def rt(a, idx, sidx=None):
    if not RT: return
    a(f"""
    s_memrealtime s[92:93]
    s_lshl_b32 s94, s2, 10
    s_add_u32 s94, s94, {DBGT + 4*idx}
    s_waitcnt lgkmcnt(0)
    """)
    if sidx is not None:
        a(f"s_lshl_b32 s95, s{sidx}, 2")
        a(f"s_add_u32 s94, s94, s95")
    a(f"""
    v_mov_b32 v22, s92
    v_mov_b32 v23, 0
    buffer_store_dword v22, v23, s[{S_WS}:{S_WS+3}], s94 offen
    """)

import os
W1_GAP = int(os.environ.get('W1_GAP', 0)); W2_GAP = int(os.environ.get('W2_GAP', 0))
W1_PRE = int(os.environ.get('W1_PRE', 0)); W2_PRE = int(os.environ.get('W2_PRE', 0)); NJ_PRE = int(os.environ.get('NJ_PRE', 0))
MEMAHEAD = int(os.environ.get('MEMAHEAD', 0))
ABID = int(os.environ.get('ABID', 1))
S_TCH = 47

def frag_regs():
    loc = {}
    regs = [ar(8 * i, 8) for i in range(32)] + [vr(80 + 8 * i, 8) for i in range(22)]
    ri = 0; m = 0
    order = [(T, kk) for kk in range(6) for T in range(6)]
    order += [(T, kk) for kk in range(6, 9) for T in range(4)]
    order += [(T, kk) for kk in range(6, 9) for T in (4, 5)]
    for n, (T, kk) in enumerate(order):
        if n % 3 == 2:
            loc[(1, T, kk)] = ("lds", m); m += 1
        else:
            loc[(1, T, kk)] = ("reg", regs[ri]); ri += 1
    for U in range(9):
        for ks in range(2):
            loc[(3, U, ks)] = ("reg", regs[ri]); ri += 1
    assert m == 18 and ri == 54
    return loc, order

def sub(reg8):
    k = reg8[0]; lo = int(reg8[2:reg8.index(":")])
    return k, lo

def rng(k, lo, n):
    return f"{k}[{lo}:{lo+n-1}]" if n > 1 else f"{k}{lo}"

def gen_team(a, dbg_time=False):
    loc, order = frag_regs()
    vIDX, vWl, vSh, vZw, vZr, vSw, vSrX, vSr0, vOr, vLane, vPW, vKX = range(12)
    vZero = vIDX
    AB = [12, 16, 20]
    ACC = [24, 28, 32, 36, 40, 44]
    WB = [48, 56]
    KXR = 64; VXR = 72
    WSR = f"s[{S_WS}:{S_WS+3}]"
    lg = Q(a, "lgkmcnt", 15); vm = Q(a, "vmcnt", 63)
    def stamp(i):
        if dbg_time: a(f"{'s_memrealtime' if '--real' in sys.argv else 's_memtime'} s[{64+2*i}:{65+2*i}]") if i < 10 else None

    a.label("TEAM")
    rt(a, 0)
    stamp(10)
    a(f"v_and_b32 v{vLane}, 63, v0")
    a(f"v_mov_b32 v79, v0")
    L = f"v{vLane}"
    a(f"""
    v_and_b32 v12, 15, {L}            ; i
    v_lshrrev_b32 v13, 4, {L}         ; g
    v_and_b32 v14, 7, {L}             ; i&7
    v_bfe_u32 v15, {L}, 3, 1          ; i>>3
    v_lshrrev_b32 v16, 5, {L}         ; lane>>5 = g>>1
    v_and_b32 v17, 1, v13             ; g&1
    v_and_b32 v22, 1, {L}             ; hf = i&1
    v_lshrrev_b32 v23, 1, v12         ; t = i>>1
    s_mul_i32 s{S_T0}, s{S_W}, {L_REG}
    s_add_u32 s{S_T0}, s{S_T0}, {L_SC}        ; scratch region of this wave
    v_mov_b32 v18, {0x44440000 if ABID else 0x00104444}
    v_mov_b32 v19, {0xeeee0000 if ABID else 0x0010eeee}
    v_cmp_lt_u32 vcc, 0, v22
    v_cndmask_b32 v{vIDX}, v18, v19, vcc
    s_mul_i32 s{S_T1}, s{S_W}, 36864
    v_lshlrev_b32 v18, 4, {L}
    v_add_u32 v{vWl}, s{S_T1}, v18
    v_lshlrev_b32 v20, 8, v13
    v_lshl_add_u32 v20, v22, 7, v20
    v_lshl_add_u32 v20, v23, 4, v20
    v_add_u32 v{vSh}, {L_SH}, v20
    ; vZw = region + n*32 + g*4
    v_lshlrev_b32 v20, 5, v12
    v_lshl_add_u32 v20, v13, 2, v20
    v_add_u32 v{vZw}, s{S_T0}, v20
    v_bfe_u32 v20, {L}, 2, 2          ; r
    v_lshl_add_u32 v20, v13, 3, v20   ; 8g+r
    v_lshlrev_b32 v20, 5, v20
    v_and_b32 v21, 3, {L}
    v_lshl_add_u32 v20, v21, 3, v20
    v_add_u32 v{vZr}, s{S_T0}, v20
    v_lshl_add_u32 v20, v13, 3, v14   ; g*8+(i&7)
    v_lshlrev_b32 v20, 4, v20
    v_add_u32 v21, s{S_T0}, v20
    v_mov_b32 v19, 0x40000
    v_cmp_lt_u32 vcc, 0, v15          ; i>=8
    v_cndmask_b32 v{vSw}, v19, v21, vcc
    v_mov_b32 v19, 1280
    v_mov_b32 v21, 768
    v_cndmask_b32 v19, v19, v21, vcc
    v_add3_u32 v{vSrX}, v20, v19, 0
    v_add_u32 v{vSrX}, {L_SC}, v{vSrX}
    v_lshl_add_u32 v20, v16, 3, v14
    v_lshlrev_b32 v20, 4, v20
    v_lshl_add_u32 v20, v17, 3, v20
    v_add_u32 v{vSr0}, {L_SC}, v20
    v_lshl_add_u32 v20, v17, 1, v22
    v_lshl_add_u32 v20, v20, 3, v23
    v_lshlrev_b32 v20, 4, v20
    v_mul_u32_u24 v21, {L_REG}, v16
    v_add3_u32 v{vOr}, v20, v21, 0
    v_add_u32 v{vOr}, {L_SC+256}, v{vOr}
    ; vPW = (18w + (n>>2))*4096 + ((n>>1)&1)*64 + g*16 + (n&1)*8
    s_mul_i32 s{S_T1}, s{S_W}, 18
    v_lshrrev_b32 v20, 2, v12
    v_add_u32 v20, s{S_T1}, v20
    v_lshlrev_b32 v20, 12, v20
    v_bfe_u32 v21, v12, 1, 1
    v_lshl_add_u32 v20, v21, 6, v20
    v_lshl_add_u32 v20, v13, 4, v20
    v_lshl_add_u32 v{vPW}, v22, 3, v20
    ; vKX = i*256 + w*64 + g*16
    v_lshlrev_b32 v20, 8, v12
    v_lshl_add_u32 v20, v13, 4, v20
    s_lshl_b32 s{S_T1}, s{S_W}, 6
    v_add_u32 v{vKX}, s{S_T1}, v20
    s_mov_b32 s{S_MHG}, 0x00f000f0
    s_mov_b32 s{S_MHG+1}, 0x00f000f0
    s_mov_b32 s{S_CEXP}, 0x3e0293ee
    """)
    a(f"""
    v_lshrrev_b32 v24, 4, v79         ; rho0
    v_and_b32 v25, 15, v79            ; cc
    v_and_b32 v26, 7, v24
    v_bfe_u32 v27, v24, 3, 1
    v_lshlrev_b32 v27, 1, v27
    v_xor_b32 v26, v26, v27           ; key1
    v_lshlrev_b32 v26, 1, v26
    v_xor_b32 v26, v25, v26           ; pos
    v_lshlrev_b32 v26, 4, v26
    v_lshl_add_u32 v26, v24, 8, v26
    v_add_u32 v28, {L_SH}, v26
    v_and_b32 v27, 1, v24
    v_bfe_u32 v26, v24, 2, 1
    v_lshl_add_u32 v27, v26, 1, v27
    v_lshlrev_b32 v27, 1, v27
    v_xor_b32 v26, v25, v27
    v_lshlrev_b32 v26, 4, v26
    v_lshl_add_u32 v26, v24, 8, v26
    v_add_u32 v29, {L_SH}, v26
    v_xor_b32 v30, 128, v29           ; u odd
    v_and_b32 v26, 12, v25
    v_bfe_u32 v31, v25, 1, 1
    v_or_b32 v26, v26, v31
    v_xor_b32 v26, v26, v27
    v_lshlrev_b32 v26, 4, v26
    v_and_b32 v31, 1, v25
    v_lshl_add_u32 v26, v31, 3, v26
    v_lshl_add_u32 v26, v24, 8, v26
    v_add_u32 v18, {L_SH}, v26
    v_xor_b32 v19, 32, v18
    v_xor_b32 v20, 128, v18
    v_xor_b32 v21, 160, v18
    v_lshlrev_b32 v31, 13, v24
    v_lshl_add_u32 v31, v25, 4, v31
    v_mul_u32_u24 v26, 1152, v24
    v_lshrrev_b32 v27, 2, v25
    v_mul_u32_u24 v27, 288, v27
    v_and_b32 v25, 3, v25
    v_lshl_add_u32 v27, v25, 4, v27
    v_add_u32 v79, v26, v27
    """)
    a(f"""
    v_bfe_u32 v32, {L}, 2, 2          ; r
    v_and_b32 v33, 3, {L}             ; c
    v_lshrrev_b32 v34, 1, v32         ; r>>1
    v_and_b32 v35, 1, v32             ; r&1
    v_lshrrev_b32 v36, 1, v13         ; gb>>1
    s_lshl_b32 s{S_T1}, s{S_W}, 2     ; 4w
    """)
    RA1 = [40, 41, 42, 43]
    RA3 = [44, 45, 46, 47]
    for mp in range(2):
        a(f"""
        v_lshl_add_u32 v37, v17, 2, v35       ; 4*(gb&1) + (r&1)
        v_add_u32 v37, {2*mp}, v37            ; 2j + (r&1)
        v_lshl_add_u32 v38, v34, 3, v37       ; rho15
        v_lshl_add_u32 v38, v36, 4, v38       ; + 16*(gb>>1)
        v_lshlrev_b32 v39, 1, v34
        v_xor_b32 v37, v37, v39               ; key
        v_lshlrev_b32 v37, 1, v37
        v_lshrrev_b32 v39, 1, v33
        v_add_u32 v39, s{S_T1}, v39           ; 4w + (c>>1)
        v_xor_b32 v37, v37, v39
        v_lshlrev_b32 v37, 4, v37
        v_lshl_add_u32 v37, v38, 8, v37
        v_and_b32 v39, 1, v33
        v_lshl_add_u32 v37, v39, 3, v37
        v_add_u32 v{RA1[2*mp]}, {L_SH}, v37
        v_xor_b32 v{RA1[2*mp+1]}, 32, v{RA1[2*mp]}
        """)
        a(f"""
        v_lshl_add_u32 v38, v17, 4, v35
        v_lshl_add_u32 v38, v36, 3, v38
        v_lshl_add_u32 v38, v34, 2, v38
        v_add_u32 v38, {2*mp}, v38
        v_lshl_add_u32 v37, v34, 1, v35
        v_lshl_add_u32 v37, v17, 2, v37       ; key
        v_lshlrev_b32 v37, 1, v37
        v_lshrrev_b32 v39, 1, v33
        v_add_u32 v39, s{S_T1}, v39
        v_xor_b32 v37, v37, v39
        v_lshlrev_b32 v37, 4, v37
        v_lshl_add_u32 v37, v38, 8, v37
        v_and_b32 v39, 1, v33
        v_lshl_add_u32 v37, v39, 3, v37
        v_add_u32 v{RA3[2*mp]}, {L_SH}, v37
        v_xor_b32 v{RA3[2*mp+1]}, 32, v{RA3[2*mp]}
        """)
    a(f"""
    v_mov_b32 v39, v79
    v_mov_b32 v32, v18
    v_mov_b32 v33, v19
    v_mov_b32 v34, v20
    v_mov_b32 v35, v21
    s_mov_b32 s{S_T2}, 0x05040100
    s_mov_b32 s{S_T3}, 0x07060302
    """)
    stages = []
    for mat in range(3):
        for kk in range(9):
            stages.append((1, mat, kk))
    for ks in range(2):
        for up in range(5):
            stages.append((3, ks, up))
    LB = [48, 64]
    TMPF = 12
    SRDS = [S_A, S_B, S_C]
    def issue_loads(n):
        kind, x, y = stages[n]
        b = LB[n % 2]
        if kind == 1:
            a(f"s_lshl_b32 s{S_T1}, s{S_H}, 8")
            a(f"s_add_u32 s{S_T1}, s{S_T1}, {y*64*8192}")
            for u in range(4):
                a(f"buffer_load_dwordx4 v[{b+4*u}:{b+4*u+3}], v31, s[{SRDS[x]}:{SRDS[x]+3}], s{S_T1} offen")
                vm.issue(("ld", n))
                if u < 3: a(f"s_add_u32 s{S_T1}, s{S_T1}, {16*8192}")
        else:
            a(f"s_mul_i32 s{S_T1}, s{S_H}, 147456")
            a(f"s_add_u32 s{S_T1}, s{S_T1}, {x*64*1152 + y*64}")
            for u in range(4):
                a(f"buffer_load_dwordx4 v[{b+4*u}:{b+4*u+3}], v39, s[{S_D}:{S_D+3}], s{S_T1} offen")
                vm.issue(("ld", n))
                if u < 3: a(f"s_add_u32 s{S_T1}, s{S_T1}, {16*1152}")
    vm.q = []
    issue_loads(0); issue_loads(1)
    for n, (kind, x, y) in enumerate(stages):
        b = LB[n % 2]
        vm.wait(("ld", n))
        for u in range(4):
            d = b + 4 * u
            if kind == 3 and y < 4:
                a(f"""
                v_perm_b32 v12, v{d+1}, v{d}, s{S_T2}
                v_perm_b32 v13, v{d+3}, v{d+2}, s{S_T2}
                v_perm_b32 v14, v{d+1}, v{d}, s{S_T3}
                v_perm_b32 v15, v{d+3}, v{d+2}, s{S_T3}
                ds_write_b64 v{32 + 2*(u%2)}, v[12:13] offset:{4096*u}
                ds_write_b64 v{33 + 2*(u%2)}, v[14:15] offset:{4096*u}
                """)
            else:
                wa = 28 if kind == 1 else (29 if u % 2 == 0 else 30)
                a(f"ds_write_b128 v{wa}, v[{d}:{d+3}] offset:{4096*u}")
        a("s_waitcnt lgkmcnt(0)")
        a("s_barrier")
        if n + 2 < len(stages): issue_loads(n + 2)
        RA = RA1 if kind == 1 else RA3
        ntiles = 2 if not (kind == 3 and y == 4) else 1
        wb = []
        for nt in range(ntiles):
            key = (1, 2 * x + nt, y) if kind == 1 else (3, 2 * y + nt, x)
            where, what = loc[key]
            if where == "reg":
                k, lo = sub(what)
            else:
                k, lo = "v", TMPF + 8 * nt
                wb.append((what, lo))
            for hb in range(2):
                for mp in range(2):
                    a(f"ds_read_b64_tr_b16 {rng(k, lo + 4*hb + 2*mp, 2)}, v{RA[2*mp+nt]} offset:{8192*hb}")
        a("s_waitcnt lgkmcnt(0)")
        for (m, lo) in wb:
            a(f"ds_write_b128 v{vWl}, v[{lo}:{lo+3}] offset:{2048*m}")
            a(f"ds_write_b128 v{vWl}, v[{lo+4}:{lo+7}] offset:{2048*m+1024}")
        a("s_barrier")
    stamp(11)
    rt(a, 1)
    a(f"""
    v_mov_b32 v24, -1
    v_mov_b32 v25, -1
    v_mov_b32 v26, -1
    v_mov_b32 v27, -1
    v_lshl_add_u32 v29, s{S_W}, 6, v{vLane}
    v_lshlrev_b32 v28, 4, v29
    s_mul_i32 s{S_T1}, s{S_H}, 18432
    s_add_u32 s{S_T1}, s{S_T1}, {PART}
    """)
    for u in range(4):
        a(f"buffer_store_dwordx4 v[24:27], v28, {WSR}, s{S_T1} offen")
        a(f"s_add_u32 s{S_T1}, s{S_T1}, 4096")
    a(f"""
    v_cmp_gt_u32 vcc, 128, v29
    s_mov_b64 exec, vcc
    buffer_store_dwordx4 v[24:27], v28, {WSR}, s{S_T1} offen
    v_cmp_gt_u32 vcc, 54, v29
    s_mov_b64 exec, vcc
    s_mul_i32 s{S_T1}, s{S_H}, 864
    s_add_u32 s{S_T1}, s{S_T1}, {MEM+9216}
    buffer_store_dwordx4 v[24:27], v28, {WSR}, s{S_T1} offen
    s_mov_b64 exec, -1
    """)
    if not MEMAHEAD:
        a(f"""
        s_mul_i32 s{S_T1}, s{S_H}, 18720
        s_add_u32 s{S_T1}, s{S_T1}, {MEM}
        """)
        for u in range(4):
            a(f"buffer_store_dwordx4 v[24:27], v28, {WSR}, s{S_T1} offen")
            a(f"s_add_u32 s{S_T1}, s{S_T1}, 4096")
        a(f"""
        v_cmp_gt_u32 vcc, 146, v29
        s_mov_b64 exec, vcc
        buffer_store_dwordx4 v[24:27], v28, {WSR}, s{S_T1} offen
        s_mov_b64 exec, -1
        """)
    a(f"""
    v_and_b32 v12, 7, {L}
    v_mul_u32_u24 v12, 1152, v12
    v_lshrrev_b32 v13, 3, {L}
    v_lshl_add_u32 v12, v13, 4, v12    ; t*1152 + (lane>>3)*16
    s_lshl_b32 s{S_T1}, s{S_W}, 8
    s_lshl_b32 s{S_T2}, s{S_W}, 11
    v_lshlrev_b32 v14, 4, {L}
    v_add_u32 v14, {L_SH}, v14
    v_add_u32 v13, s{S_T2}, v14
    s_load_dwordx2 s[{S_A}:{S_A+1}], s[0:1], 80
    s_waitcnt lgkmcnt(0)
    s_and_b32 s{S_A+1}, s{S_A+1}, 0xffff
    s_mov_b32 s{S_A+2}, 9216
    s_mov_b32 s{S_A+3}, 0x00020000
    buffer_load_dwordx4 v[16:19], v12, s[{S_A}:{S_A+3}], s{S_T1} offen
    buffer_load_dwordx4 v[20:23], v12, s[{S_A}:{S_A+3}], s{S_T1} offen offset:128
    buffer_load_dwordx4 v[24:27], v12, s[{S_A}:{S_A+3}], 0 offen offset:1024
    s_waitcnt vmcnt(0)
    ds_write_b128 v13, v[16:19]
    ds_write_b128 v13, v[20:23] offset:1024
    ds_write_b128 v14, v[24:27] offset:8192
    """)
    vm.q = []
    a(f"""
    s_waitcnt lgkmcnt(0)
    s_barrier
    s_cmp_lg_u32 s{S_W}, 0
    s_cbranch_scc1 TEAM_BAR_DONE
    v_mov_b32 v12, 1
    v_mov_b32 v13, {D_TEAMBAR*4}
    s_mov_b64 exec, 1
    buffer_atomic_add v12, v13, s[{S_DBG}:{S_DBG+3}], 0 offen
    """)
    a.label("TEAM_BAR_POLL")
    a(f"""
    buffer_load_dword v14, v13, s[{S_DBG}:{S_DBG+3}], 0 offen sc1
    s_waitcnt vmcnt(0)
    v_readfirstlane_b32 s{S_T1}, v14
    s_cmp_lt_u32 s{S_T1}, 32
    s_cbranch_scc1 TEAM_BAR_POLL
    """)
    a(f"v_mov_b32 v13, {FLG+F_KV}")
    a.label("TEAM_KV0_POLL")
    a(f"""
    buffer_load_dword v14, v13, {WSR}, 0 offen sc1
    s_waitcnt vmcnt(0)
    v_readfirstlane_b32 s{S_T1}, v14
    s_lshr_b32 s{S_T1}, s{S_T1}, s{S_H}
    s_bitcmp1_b32 s{S_T1}, 0
    s_cbranch_scc0 TEAM_KV0_POLL
    s_mov_b64 exec, -1
    """)
    a.label("TEAM_BAR_DONE")
    a("s_barrier")
    rt(a, 2)
    a(f"""
    s_mov_b32 s{S_STEP}, 0
    s_lshl_b32 s{S_T1}, s{S_H}, 13
    s_add_u32 s{S_KXO}, s{S_T1}, {KX}
    s_add_u32 s{S_KXO2}, s{S_KXO}, 4096
    s_add_u32 s{S_VXO}, s{S_T1}, {VX}
    s_lshl_b32 s{S_T1}, s{S_H}, 12
    s_add_u32 s{S_KMO}, s{S_T1}, {KM}
    s_lshl_b32 s{S_T1}, s{S_H}, 11
    s_add_u32 s{S_VMO}, s{S_T1}, {VM}
    s_lshl_b32 s{S_T1}, s{S_H}, 7
    s_add_u32 s{S_PWO}, s{S_T1}, {PART}
    s_add_u32 s{S_PW1}, s{S_PWO}, 16384
    s_add_u32 s{S_PW2}, s{S_PWO}, 32768
    s_add_u32 s{S_PW3}, s{S_PWO}, 49152
    s_mul_i32 s{S_T1}, s{S_W}, {18*4096}
    s_add_u32 s{S_PW4}, s{S_PWO}, 65536
    s_add_u32 s{S_PW4}, s{S_PW4}, s{S_T1}
    s_mov_b32 s96, 0
    s_mov_b32 s97, 0
    s_lshl_b32 s{S_JOB}, s{S_W}, 5
    s_add_u32 s{S_JOB}, s{S_JOB}, s{S_H}
    s_lshl_b32 s{S_T1}, s{S_JOB}, 12
    s_add_u32 s{S_RDO}, s{S_T1}, {PART}
    s_lshl_b32 s{S_T1}, s{S_JOB}, 7
    s_add_u32 s{S_MEMW}, s{S_T1}, {MEM+9216}
    s_lshl_b32 s{S_T1}, s{S_W}, 11
    s_add_u32 s{S_MEMR}, s{S_T1}, {MEM+9216}
    s_lshl_b32 s{S_T1}, s{S_W}, 8
    s_add_u32 s{S_MEMR3}, s{S_T1}, {MEM+9216+8192}
    s_lshl_b32 s{S_T1}, s{S_H}, 4
    s_lshl_b32 s{S_T2}, s{S_W}, 2
    s_add_u32 s{S_FKM}, s{S_T1}, s{S_T2}
    s_add_u32 s{S_FKM}, s{S_FKM}, {FLG+F_KM}
    """)
    def vx_addr(dst):
        a(f"""
        v_bfe_u32 v{dst}, v{vWl}, 4, 4
        v_lshl_add_u32 v{dst}, s{S_W}, 5, v{dst}
        v_lshlrev_b32 v{dst}, 6, v{dst}
        v_bfe_u32 v{dst+1}, v{vWl}, 8, 2
        v_lshl_add_u32 v{dst}, v{dst+1}, 4, v{dst}
        """)
    def kx_load():
        a(f"buffer_load_dwordx4 v[{KXR}:{KXR+3}], v{vKX}, {WSR}, s{S_KXO} offen")
        a(f"buffer_load_dwordx4 v[{KXR+4}:{KXR+7}], v{vKX}, {WSR}, s{S_KXO2} offen")
    def vx_load(ad):
        a(f"buffer_load_dwordx4 v[{VXR}:{VXR+3}], v{ad}, {WSR}, s{S_VXO} offen")
        a(f"buffer_load_dwordx4 v[{VXR+4}:{VXR+7}], v{ad}, {WSR}, s{S_VXO} offen offset:1024")
    def zero4(r):
        a(f"ds_read_b128 v[{r}:{r+3}], v{vIDX} offset:0" if False else f"ds_read_b128 v[{r}:{r+3}], v{vZero}")
        lg.issue("zero")
    kx_load(); vx_addr(12); vx_load(12)
    a(f"""
    s_add_u32 s{S_KXO}, s{S_KXO}, {32*8192}
    s_add_u32 s{S_KXO2}, s{S_KXO2}, {32*8192}
    s_add_u32 s{S_VXO}, s{S_VXO}, {32*8192}
    """)
    for r in range(24): a(f"v_mov_b32 v{ACC[0]+r}, 0")
    a("s_waitcnt vmcnt(0)")

    def w_read(m):
        b = WB[m % 2]
        a(f"ds_read_b128 v[{b}:{b+3}], v{vWl} offset:{2048*m}"); lg.issue(("w", m))
        a(f"ds_read_b128 v[{b+4}:{b+7}], v{vWl} offset:{2048*m+1024}"); lg.issue(("w", m))
    def a_read(kk):
        b = AB[kk % 3]
        a(f"ds_read_b128 v[{b}:{b+3}], v{vSh} offset:{1024*kk}"); lg.issue(("a", kk))
    w_read(0); w_read(1)
    a("s_waitcnt lgkmcnt(0)")
    a.label("TEAM_STEP")
    lg.q = []
    stamp(0)
    a_read(0); a_read(1); a_read(2)
    def smf(T, kk):
        where, what = loc[(1, T, kk)]
        ab = AB[kk % 3]
        need = [t for t in (("a", kk), ("w", what) if where == "lds" else None) if t and lg.has(t)]
        if need:
            last = max(need, key=lambda t: max(i for i, x in enumerate(lg.q) if x == t))
            lg.wait(last)
        b = vr(WB[what % 2], 8) if where == "lds" else what
        a(f"v_smfmac_f32_16x16x64_bf16 v[{ACC[T]}:{ACC[T]+3}], v[{ab}:{ab+3}], {b}, v{vIDX}{' abid:1' if ABID else ''}")
        if where == "lds" and what + 2 < 18:
            w_read(what + 2)
    for n, (T, kk) in enumerate(order[:48]):
        smf(T, kk)
        if kk < 6 and T == 5: a_read(kk + 3)
    stamp(1)
    q0, q1, k0, k1 = ACC[0:4]
    side = []
    S = side.append
    for (qq, kq, off) in ((q0, k0, 0), (q1, k1, 128)):
        S(f"v_add_f32 v{qq}, v{qq}, v{qq+1}")
        S(f"v_add_f32 v{qq+2}, v{qq+2}, v{qq+3}")
        S(f"v_cvt_pk_bf16_f32 v{qq}, v{qq}, v{qq+2}")
        S(f"v_add_f32 v{kq}, v{kq}, v{kq+1}")
        S(f"v_add_f32 v{kq+2}, v{kq+2}, v{kq+3}")
        S(f"v_cvt_pk_bf16_f32 v{kq}, v{kq}, v{kq+2}")
        S(("ds", f"ds_write2_b32 v{vZw}, v{kq}, v{qq} offset0:{off} offset1:{off+4}", "zw"))
    Z = q1
    S(("ds", f"ds_read_b64_tr_b16 v[{Z}:{Z+1}], v{vZr}", "z"))
    S(("ds", f"ds_read_b64_tr_b16 v[{Z+2}:{Z+3}], v{vZr} offset:128", "z"))
    def emit_side(n):
        k = 0
        while side and k < n:
            it = side.pop(0)
            if isinstance(it, str): a(it)
            elif it[0] == "ds": a(it[1]); lg.issue(it[2])
            k += 1
    cnt = [0, 2, 4, 5, 5, 0]
    for n, (T, kk) in enumerate(order[48:]):
        smf(T, kk)
        emit_side(cnt[n])
    emit_side(1000)
    v0_, v1_ = ACC[4], ACC[5]
    VMB = 48
    T0, T1, T2 = q0, k0, k1
    vx_addr(60)
    a(f"""
    v_lshrrev_b32 v61, 2, v60
    v_mov_b32 v{VMB+1}, 0
    v_mov_b32 v{VMB+3}, 0
    """)
    lg.wait("z")
    a(f"""
    v_mfma_f32_16x16x32_bf16 v[{T1}:{T1+3}], v[{KXR}:{KXR+3}], v[{Z}:{Z+3}], 0
    v_mfma_f32_16x16x32_bf16 v[{T2}:{T2+3}], v[{KXR+4}:{KXR+7}], v[{Z}:{Z+3}], 0
    v_mfma_f32_16x16x32_bf16 v[{T0}:{T0+3}], v[{Z}:{Z+3}], v[{Z}:{Z+3}], 0
    v_add_f32 v{v0_}, v{v0_}, v{v0_+1}
    v_add_f32 v{v0_+2}, v{v0_+2}, v{v0_+3}
    v_add_f32 v{v1_}, v{v1_}, v{v1_+1}
    v_add_f32 v{v1_+2}, v{v1_+2}, v{v1_+3}
    v_cvt_pk_bf16_f32 v{VMB}, v{v0_}, v{v0_+2}
    v_cvt_pk_bf16_f32 v{VMB+2}, v{v1_}, v{v1_+2}
    ds_write_b128 v{vSw}, v[{T1}:{T1+3}] offset:768
    ds_write_b128 v{vSw}, v[{T2}:{T2+3}] offset:1280
    ds_write_b128 v{vSw}, v[{T0}:{T0+3}]
    buffer_store_dwordx4 v[{Z}:{Z+3}], v{vKX}, {WSR}, s{S_KMO} offen sc1
    """)
    kx_load()
    stamp(2)
    lg.wait_all()
    a("s_barrier")
    stamp(3)
    X = 12; TZ = 28
    for w2 in range(4):
        a(f"ds_read_b128 v[{X+4*w2}:{X+4*w2+3}], v{vSrX} offset:{L_REG*w2}"); lg.issue(("x", w2))
        a(f"ds_read_b64 v[{TZ+2*w2}:{TZ+2*w2+1}], v{vSr0} offset:{L_REG*w2}"); lg.issue(("x", w2))
    A3 = [36, 40, 44, 12, 16, 20, 24, 48, 52]
    for U in range(3): zero4(A3[U])
    a(f"""
    buffer_store_dword v{VMB}, v61, {WSR}, s{S_VMO} offen sc1
    buffer_store_dword v{VMB+2}, v61, {WSR}, s{S_VMO} offen offset:256 sc1
    """)
    lg.wait(("x", 1))
    a(f"""
    v_pk_add_f32 v[{X}:{X+1}], v[{X}:{X+1}], v[{X+4}:{X+5}]
    v_pk_add_f32 v[{X+2}:{X+3}], v[{X+2}:{X+3}], v[{X+6}:{X+7}]
    v_pk_add_f32 v[{TZ}:{TZ+1}], v[{TZ}:{TZ+1}], v[{TZ+2}:{TZ+3}]
    """)
    lg.wait(("x", 3))
    a(f"""
    v_pk_add_f32 v[{X+8}:{X+9}], v[{X+8}:{X+9}], v[{X+12}:{X+13}]
    v_pk_add_f32 v[{X+10}:{X+11}], v[{X+10}:{X+11}], v[{X+14}:{X+15}]
    v_pk_add_f32 v[{TZ+4}:{TZ+5}], v[{TZ+4}:{TZ+5}], v[{TZ+6}:{TZ+7}]
    v_pk_add_f32 v[{X}:{X+1}], v[{X}:{X+1}], v[{X+8}:{X+9}]
    v_pk_add_f32 v[{X+2}:{X+3}], v[{X+2}:{X+3}], v[{X+10}:{X+11}]
    v_pk_add_f32 v[{X+4}:{X+5}], v[{TZ}:{TZ+1}], v[{TZ+4}:{TZ+5}]
    """)
    Mx = X + 6; Tm = X + 7
    PX = 28; PM = 32
    O = 52
    a(f"""
    v_max3_f32 v{Mx}, v{X}, v{X+1}, v{X+2}
    v_max3_f32 v{Tm}, v{X+3}, v{X+4}, v{X+5}
    v_max_f32 v{Mx}, v{Mx}, v{Tm}
    """)
    zero4(20); zero4(24)
    a(f"""
    v_max_f32_dpp v{Mx}, v{Mx}, v{Mx} row_ror:8 row_mask:0xf bank_mask:0xf
    v_mov_b32 v{Tm}, v{Mx}
    v_mov_b32 v{PM+1}, 0
    s_nop 0
    v_permlane16_swap_b32 v{Tm}, v{Mx}
    v_max_f32 v{Mx}, v{Mx}, v{Tm}
    v_mov_b32 v{Tm}, v{Mx}
    s_nop 1
    v_permlane32_swap_b32 v{Tm}, v{Mx}
    v_max_f32 v{Mx}, v{Mx}, v{Tm}
    v_mul_f32 v{Mx}, s{S_CEXP}, v{Mx}
    """)
    for r in range(6): a(f"v_fma_f32 v{X+r}, v{X+r}, s{S_CEXP}, -v{Mx}")
    for r in range(6): a(f"v_exp_f32 v{X+r}, v{X+r}")
    a(f"""
    v_cvt_pk_bf16_f32 v{PM}, v{X+4}, v{X+5}
    v_cvt_pk_bf16_f32 v{PX}, v{X}, v{X+1}
    v_cvt_pk_bf16_f32 v{PX+1}, v{X+2}, v{X+3}
    v_add_f32 v{Mx}, v{X+4}, v{X+5}
    v_mfma_f32_16x16x16_bf16 v[{O}:{O+3}], v[{VMB}:{VMB+1}], v[{PM}:{PM+1}], 0
    v_mov_b32_dpp v{PX+2}, v{PX} row_ror:8 row_mask:0xf bank_mask:0xf
    v_mov_b32_dpp v{PX+3}, v{PX+1} row_ror:8 row_mask:0xf bank_mask:0xf
    v_mfma_f32_16x16x16_bf16 v[{O+4}:{O+7}], v[{VMB+2}:{VMB+3}], v[{PM}:{PM+1}], 0
    v_add_f32 v{Tm}, v{X}, v{X+1}
    v_fma_f32 v{Mx}, v{Mx}, 0.5, v{Tm}
    v_add_f32 v{Tm}, v{X+2}, v{X+3}
    v_add_f32 v{Mx}, v{Mx}, v{Tm}
    v_mfma_f32_16x16x32_bf16 v[{O}:{O+3}], v[{VXR}:{VXR+3}], v[{PX}:{PX+3}], v[{O}:{O+3}]
    v_mfma_f32_16x16x32_bf16 v[{O+4}:{O+7}], v[{VXR+4}:{VXR+7}], v[{PX}:{PX+3}], v[{O+4}:{O+7}]
    v_add_f32_dpp v{Mx}, v{Mx}, v{Mx} row_ror:8 row_mask:0xf bank_mask:0xf
    v_mov_b32 v{Tm}, v{Mx}
    """)
    zero4(12); zero4(48)
    a(f"""
    v_permlane16_swap_b32 v{Tm}, v{Mx}
    v_add_f32 v{Mx}, v{Mx}, v{Tm}
    v_mov_b32 v{Tm}, v{Mx}
    """)
    vx_load(60)
    a(f"""
    v_permlane32_swap_b32 v{Tm}, v{Mx}
    v_add_f32 v{Mx}, v{Mx}, v{Tm}
    v_rcp_f32 v{Mx}, v{Mx}
    s_cmp_eq_u32 s{S_STEP}, 63
    v_mov_b32 v{Tm}, v{Mx}
    """)
    for p in range(4): a(f"v_pk_mul_f32 v[{O+2*p}:{O+2*p+1}], v[{O+2*p}:{O+2*p+1}], v[{Mx}:{Tm}]")
    OP = 60
    for p in range(4): a(f"v_cvt_pk_bf16_f32 v{OP+p}, v{O+2*p}, v{O+2*p+1}")
    a(f"ds_write_b128 v{vSw}, v[{OP}:{OP+3}] offset:256")
    zero4(16); zero4(52)
    stamp(4)
    a("s_waitcnt lgkmcnt(0)")
    a("s_barrier")
    stamp(5)
    AO = 56
    a(f"ds_read_b128 v[{AO}:{AO+3}], v{vOr}")
    a(f"ds_read_b128 v[{AO+4}:{AO+7}], v{vOr} offset:{2*L_REG}")
    a("s_cbranch_scc1 TEAM_LAST")
    a(f"""
    v_bfe_u32 v28, v{vWl}, 7, 1
    v_lshlrev_b32 v28, 12, v28
    v_bfe_u32 v29, v{vWl}, 6, 1
    v_lshl_add_u32 v28, v29, 6, v28
    v_bfe_u32 v29, v{vWl}, 8, 2
    v_lshl_add_u32 v28, v29, 4, v28
    v_bfe_u32 v29, v{vWl}, 5, 1
    v_lshl_add_u32 v28, v29, 3, v28
    v_bfe_u32 v29, v{vWl}, 4, 1
    v_lshl_add_u32 v28, v29, 30, v28
    """)
    a("s_waitcnt lgkmcnt(0)" if dbg_time else "s_waitcnt lgkmcnt(1)")
    PWS = [S_PWO, S_PW1, S_PW2, S_PW3]
    def pair_out(pp):
        Ua, Ub = A3[2 * pp], A3[2 * pp + 1]
        return [f"v_add_f32 v{Ua}, v{Ua}, v{Ua+1}",
             f"v_add_f32 v{Ua+2}, v{Ua+2}, v{Ua+3}",
             f"v_add_f32 v{Ub}, v{Ub}, v{Ub+1}",
             f"v_add_f32 v{Ub+2}, v{Ub+2}, v{Ub+3}",
             f"v_cvt_pk_bf16_f32 v{Ua}, v{Ua}, v{Ub}",
             f"v_cvt_pk_bf16_f32 v{Ua+1}, v{Ua+2}, v{Ub+2}",
             f"buffer_store_dwordx2 v[{Ua}:{Ua+1}], v{vPW}, {WSR}, s{PWS[pp]} offen"]
    U8 = A3[8]
    t8 = [f"v_add_f32 v{U8}, v{U8}, v{U8+1}",
          f"v_add_f32 v{U8+1}, v{U8+2}, v{U8+3}",
          f"s_add_u32 s{S_STEP}, s{S_STEP}, 1",
          f"v_mov_b32_dpp v{U8+2}, v{U8} quad_perm:[1,0,3,2] row_mask:0xf bank_mask:0xf",
          f"v_mov_b32_dpp v{U8+3}, v{U8+1} quad_perm:[1,0,3,2] row_mask:0xf bank_mask:0xf",
          f"v_cvt_pk_bf16_f32 v{U8}, v{U8}, v{U8+2}",
          f"v_cvt_pk_bf16_f32 v{U8+1}, v{U8+1}, v{U8+3}",
          f"buffer_store_dwordx2 v[{U8}:{U8+1}], v28, {WSR}, s{S_PW4} offen"]
    pend = []
    first = True
    seq = [8, 0, 1, 2, 3, 4, 5, 6, 7]
    for n, U in enumerate(seq):
        a(f"v_smfmac_f32_16x16x64_bf16 v[{A3[U]}:{A3[U]+3}], v[{AO}:{AO+3}], {loc[(3,U,0)][1]}, v{vIDX}{' abid:1' if ABID else ''}")
        if first: a("s_waitcnt lgkmcnt(0)"); first = False
        for _ in range(2):
            if pend: a(pend.pop(0))
        a(f"v_smfmac_f32_16x16x64_bf16 v[{A3[U]}:{A3[U]+3}], v[{AO+4}:{AO+7}], {loc[(3,U,1)][1]}, v{vIDX}{' abid:1' if ABID else ''}")
        for _ in range(2):
            if pend: a(pend.pop(0))
        if n == 2: pend += t8
        if U % 2 == 1 and 3 <= U < 8: pend += pair_out((U - 3) // 2)
    book = f"""s_add_u32 s{S_KMO}, s{S_KMO}, {32*4096}
    s_add_u32 s{S_VMO}, s{S_VMO}, {32*2048}
    s_add_u32 s{S_KXO}, s{S_KXO}, {32*8192}
    s_add_u32 s{S_KXO2}, s{S_KXO2}, {32*8192}
    s_add_u32 s{S_VXO}, s{S_VXO}, {32*8192}""".split("\n")
    for x in pend: a(x)
    for x in book: a(x)
    for x in pair_out(3): a(x)
    stamp(6)
    RL = 44
    P0, P1, P2, P3 = 38, 39, 46, 47
    a(f"""
    s_mov_b32 s{S_T2}, {PART_SLOT}
    s_sub_u32 s{S_T3}, 0, s{S_T2}
    s_bitcmp1_b32 s{S_STEP}, 0
    s_cselect_b32 s{S_T0}, s{S_T2}, s{S_T3}
    s_add_u32 s{S_PWO}, s{S_PWO}, s{S_T0}
    s_add_u32 s{S_PW1}, s{S_PW1}, s{S_T0}
    s_add_u32 s{S_PW2}, s{S_PW2}, s{S_T0}
    s_add_u32 s{S_PW3}, s{S_PW3}, s{S_T0}
    s_add_u32 s{S_PW4}, s{S_PW4}, s{S_T0}
    v_and_b32 v{P0}, 0x3f0, v{vWl}
    v_and_b32 v{P1}, 0xf0, v{P0}
    s_lshl_b32 s{S_T2}, s{S_W}, 8
    s_lshl_b32 s{S_T3}, s{S_W}, 11
    s_add_u32 s{S_T3}, s{S_T3}, {L_SH}
    s_add_u32 s{S_T2}, s{S_T2}, {L_SH+8192}
    v_add_u32 v{P2}, s{S_T3}, v{P0}
    v_add_u32 v{P3}, s{S_T2}, v{P1}
    s_cmp_lt_u32 s{S_W}, 2
    s_cselect_b32 s{S_TCH}, s{S_KXO}, s{S_VXO}
    s_and_b32 s{S_T2}, s{S_W}, 1
    s_lshl_b32 s{S_T2}, s{S_T2}, 12
    s_add_u32 s{S_TCH}, s{S_TCH}, s{S_T2}
    s_cmp_ge_u32 s{S_JOB}, 72
    s_cbranch_scc1 TEAM_NOJOB
    """)
    SEL = 28
    a(f"""
    v_and_b32 v{RL}, 0x70, v{vWl}
    v_bfe_u32 v{RL+1}, v{vWl}, 7, 3
    v_lshl_add_u32 v{RL}, v{RL+1}, 9, v{RL}
    v_and_b32 v{RL+1}, 16, v{vWl}
    v_mov_b32 v36, 0x3f80
    v_lshlrev_b32 v{RL+1}, v{RL+1}, v36
    v_bfe_u32 v36, v{vWl}, 5, 3
    v_cmp_eq_u32 vcc, 0, v36
    v_cmp_eq_u32 s[98:99], 1, v36
    v_cmp_eq_u32 s[100:101], 2, v36
    v_cndmask_b32 v{SEL}, 0, v{RL+1}, vcc
    v_cmp_eq_u32 vcc, 3, v36
    v_cndmask_b32 v{SEL+1}, 0, v{RL+1}, s[98:99]
    v_cndmask_b32 v{SEL+2}, 0, v{RL+1}, s[100:101]
    v_cndmask_b32 v{SEL+3}, 0, v{RL+1}, vcc
    """)
    def w1_loads(b, masked=False):
        if dbg_time: a("s_add_u32 s96, s96, 1")
        for hh in range(4):
            if masked: a(f"s_mov_b64 exec, s[{84+2*hh}:{85+2*hh}]")
            a(f"buffer_load_dwordx4 v[{b+4*hh}:{b+3+4*hh}], v{RL}, {WSR}, s{S_RDO} offen offset:{128*hh} sc1")
        if masked: a("s_mov_b64 exec, -1")
    D = 32
    SA = 12
    a(f"""
    v_bfe_u32 v{RL+1}, v{vWl}, 6, 1
    v_lshlrev_b32 v{RL+1}, 3, v{RL+1}
    v_bfe_u32 v36, v{vWl}, 8, 1
    v_lshl_add_u32 v{RL+1}, v36, 2, v{RL+1}
    v_bfe_u32 v36, v{vWl}, 4, 2
    v_lshl_add_u32 v{RL+1}, v36, 5, v{RL+1}
    v_and_b32 v36, 0x280, v{vWl}
    v_lshl_add_u32 v{RL+1}, v36, 21, v{RL+1}
    v_mov_b32 v40, -1
    v_mov_b32 v41, -1
    v_mov_b32 v42, -1
    v_mov_b32 v43, -1
    """)
    if W1_PRE: a(f"s_sleep {W1_PRE}")
    w1_loads(SA)
    a.label("TEAM_W1")
    for hh in range(4):
        a(f"s_waitcnt vmcnt({3 - hh})")
        a(f"v_mfma_f32_16x16x32_bf16 v[{D}:{D+3}], v[{SEL}:{SEL+3}], v[{SA+4*hh}:{SA+3+4*hh}], {'0' if hh == 0 else vr(D,4)}")
    for hh in range(4):
        b = SA + 4 * hh
        a(f"v_max3_u32 v{48+hh}, v{b}, v{b+1}, v{b+2}")
        a(f"v_max_u32 v{48+hh}, v{48+hh}, v{b+3}")
    for hh in range(4):
        a(f"v_cmp_eq_u32 s[{84+2*hh}:{85+2*hh}], -1, v{48+hh}")
    for r in range(4):
        a(f"v_add_f32_dpp v{D+r}, v{D+r}, v{D+r} row_ror:8 row_mask:0xf bank_mask:0xf")
    a(f"""
    s_or_b64 s[92:93], s[84:85], s[86:87]
    s_or_b64 s[94:95], s[88:89], s[90:91]
    v_cvt_pk_bf16_f32 v{D+4}, v{D}, v{D+1}
    v_cvt_pk_bf16_f32 v{D+5}, v{D+2}, v{D+3}
    s_or_b64 s[92:93], s[92:93], s[94:95]
    s_cbranch_scc0 TEAM_W1_OK
    """)
    w1_loads(SA, True)
    a("s_waitcnt vmcnt(0)")
    a("s_branch TEAM_W1")
    a.label("TEAM_W1_OK")
    stamp(7)
    a(f"""
    buffer_store_dword v{D+4}, v{RL+1}, {WSR}, s{S_MEMW} offen
    buffer_store_dword v{D+5}, v{RL+1}, {WSR}, s{S_MEMW} offen offset:16
    """)
    stamp(8)
    a("s_branch TEAM_W2PRE")
    a.label("TEAM_NOJOB")
    if NJ_PRE: a(f"s_sleep {NJ_PRE}")
    a(f"""
    s_cmp_lg_u32 s{S_W}, 3
    s_cbranch_scc1 TEAM_W2PRE
    s_add_u32 s{S_T1}, s{S_STEP}, 1
    s_and_b32 s{S_T2}, s{S_T1}, 3
    s_cmp_lg_u32 s{S_T2}, 0
    s_cbranch_scc1 TEAM_W2PRE
    s_cmp_ge_u32 s{S_T1}, 64
    s_cbranch_scc1 TEAM_W2PRE
    s_lshl_b32 s{S_T1}, s{S_T1}, 4
    v_mov_b32 v12, {FLG+F_KV}
    """)
    a.label("TEAM_KVP")
    a(f"""
    buffer_load_dword v13, v12, {WSR}, s{S_T1} offen sc1
    s_waitcnt vmcnt(0)
    v_readfirstlane_b32 s{S_T2}, v13
    s_lshr_b32 s{S_T2}, s{S_T2}, s{S_H}
    s_bitcmp1_b32 s{S_T2}, 0
    s_cbranch_scc0 TEAM_KVP
    """)
    a.label("TEAM_W2PRE")
    def w2_loads(b, masked=False):
        if dbg_time: a("s_add_u32 s97, s97, 1")
        for k, (ad, so, off) in enumerate(((P0, S_MEMR, ""), (P0, S_MEMR, " offset:1024"), (P1, S_MEMR3, ""))):
            if masked: a(f"s_mov_b64 exec, s[{84+2*k}:{85+2*k}]")
            a(f"buffer_load_dwordx4 v[{b+4*k}:{b+4*k+3}], v{ad}, {WSR}, s{so} offen{off} sc1")
        if masked: a("s_mov_b64 exec, -1")
    lg.q = []
    for r in (0, 1, 2): zero4(ACC[r])
    w_read(0); w_read(1)
    a(f"""
    s_add_u32 s{S_MEMW}, s{S_MEMW}, 9216
    v_mov_b32 v45, s{S_FKM}
    """)
    if W2_PRE: a(f"s_sleep {W2_PRE}")
    w2_loads(SA)
    a.label("TEAM_W2")
    for k in range(3):
        b = SA + 4 * k
        a(f"s_waitcnt vmcnt({2-k})")
        a(f"ds_write_b128 v{P2 if k < 2 else P3}, v[{b}:{b+3}]{' offset:1024' if k == 1 else ''}")
        a(f"v_max3_u32 v36, v{b}, v{b+1}, v{b+2}")
        a(f"v_max_u32 v36, v36, v{b+3}")
        a(f"v_cmp_eq_u32 s[{84+2*k}:{85+2*k}], -1, v36")
    a(f"""
    s_or_b64 s[92:93], s[84:85], s[86:87]
    s_or_b64 s[92:93], s[92:93], s[88:89]
    s_cbranch_scc0 TEAM_W2_OK
    s_and_b64 s[94:95], s[84:85], s[86:87]
    s_cmp_eq_u64 s[94:95], -1
    s_cbranch_scc0 TEAM_W2_RE
    s_sleep {max(W2_GAP,1)}
    """)
    a.label("TEAM_W2_RE")
    w2_loads(SA, True)
    a("s_waitcnt vmcnt(0)")
    a("s_branch TEAM_W2")
    a.label("TEAM_W2_OK")
    stamp(9)
    if dbg_time:
        a(f"""
        s_waitcnt lgkmcnt(0)
        s_lshl_b32 s{S_T1}, s{S_STEP}, 7
        s_lshl_b32 s{S_T2}, s{S_H}, 2
        s_add_u32 s{S_T1}, s{S_T1}, s{S_T2}
        s_add_u32 s{S_T1}, s{S_T1}, s{S_W}
        s_lshl_b32 s{S_T1}, s{S_T1}, 6
        s_add_u32 s{S_T1}, s{S_T1}, 0x7000000
        s_waitcnt vmcnt(0)
        """)
        for i in range(10):
            a(f"v_writelane_b32 v36, s{64+2*i}, {i}")
        a(f"v_writelane_b32 v36, s96, 12")
        a(f"v_writelane_b32 v36, s97, 13")
        a(f"v_bfe_u32 v37, v{vWl}, 2, 8")
        a(f"s_mov_b64 exec, 0xffff")
        a(f"buffer_store_dword v36, v37, {WSR}, s{S_T1} offen")
        a(f"s_mov_b64 exec, -1")
    if RT:
        a("s_waitcnt vmcnt(0)")
        rt(a, 16, S_STEP)
    a(f"""
    v_lshlrev_b32 v{P0}, 2, v{P0}
    v_mov_b32 v36, s{S_STEP}
    s_add_u32 s{S_MEMR}, s{S_MEMR}, 9216
    s_add_u32 s{S_MEMR3}, s{S_MEMR3}, 9216
    s_cmp_ge_u32 s{S_JOB}, 72
    s_waitcnt lgkmcnt(0)
    s_barrier
    buffer_load_dword v{vLane}, v{P0}, {WSR}, s{S_TCH} offen
    buffer_store_dword v36, v45, {WSR}, 0 offen sc1
    s_cbranch_scc1 TEAM_NORESET
    """)
    for hh in range(4):
        a(f"buffer_store_dwordx4 v[40:43], v{RL}, {WSR}, s{S_RDO} offen offset:{128*hh}")
    if MEMAHEAD: a(f"""
    s_lshl_b32 s{S_T1}, s{S_JOB}, 7
    s_add_u32 s{S_T1}, s{S_T1}, s{S_MEMW}
    s_add_u32 s{S_T1}, s{S_T1}, {2*9216}
    s_mov_b64 exec, 0xff
    buffer_store_dwordx4 v[40:43], v{P1}, {WSR}, s{S_T1} offen
    s_mov_b64 exec, -1
    """)
    a.label("TEAM_NORESET")
    zero4(ACC[3]); zero4(ACC[4]); zero4(ACC[5])
    a(f"s_add_u32 s{S_RDO}, s{S_RDO}, s{S_T0}")
    a("s_branch TEAM_STEP")
    a.label("TEAM_LAST")
    rt(a, 3)
    a(f"""
    s_waitcnt vmcnt(0) lgkmcnt(0)
    v_mov_b32 v28, 64
    v_mov_b32 v29, s{S_FKM}
    buffer_store_dword v28, v29, {WSR}, 0 offen sc1
    s_endpgm
    """)
```

```python
from asmlib import *
from layout import *
from team import *

S_RANK = 33
S_TILE = 40; S_RB = 41; S_HD = 42; S_KOFF = 43; S_WOFF = 44; S_CNT = 45; S_XS = 46
S_KB = 46; S_WB_ = 47; S_CK = 52; S_WL = 53
S_X = 48

def gen_qkv(a):
    WSR = f"s[{S_WS}:{S_WS+3}]"; XR = f"s[{S_X}:{S_X+3}]"
    SR = [f"s[{s}:{s+3}]" for s in (S_A, S_B, S_C)]
    vL, vXo, vDo, vT00, vT01, vT10, vT11, vtid = 1, 2, 3, 4, 5, 6, 7, 8
    EW = 10
    vVW, vRD, vGQ, vGV = 18, 19, 20, 21
    XF = [32, 40]
    XA = 144
    WF = [96, 120]
    def acc(m, mt, nt): return 16 * ((m * 2 + mt) * 2 + nt)
    a.label("QKV")
    a(f"""
    v_mov_b32 v{vtid}, v0
    v_and_b32 v{vL}, 63, v0
    s_load_dwordx2 s[{S_X}:{S_X+1}], s[0:1], 0
    s_lshr_b32 s{S_T0}, s{S_W}, 1          ; rh
    s_and_b32 s{S_T1}, s{S_W}, 1           ; ch
    v_lshrrev_b32 v24, 4, v{vL}
    v_and_b32 v25, 15, v{vL}
    v_lshlrev_b32 v26, 2, v24
    v_xor_b32 v25, v25, v26
    s_lshl_b32 s{S_T2}, s{S_W}, 2
    v_add_u32 v24, s{S_T2}, v24
    v_lshlrev_b32 v24, 13, v24
    v_lshl_add_u32 v{vDo}, v25, 4, v24
    v_bfe_u32 v24, v{vL}, 2, 2             ; r
    v_lshrrev_b32 v25, 5, v{vL}            ; q>>1
    v_lshl_add_u32 v25, v25, 3, v24        ; row
    v_bfe_u32 v26, v{vL}, 4, 1
    v_bfe_u32 v27, v{vL}, 1, 1
    v_lshl_add_u32 v26, v26, 1, v27
    s_lshl_b32 s{S_T2}, s{S_T1}, 3
    v_add_u32 v26, s{S_T2}, v26            ; cc
    v_lshlrev_b32 v24, 2, v24
    v_xor_b32 v26, v26, v24
    v_lshlrev_b32 v26, 4, v26
    v_lshl_add_u32 v26, v25, 8, v26
    v_and_b32 v27, 1, v{vL}
    v_lshl_add_u32 v{vT00}, v27, 3, v26
    v_xor_b32 v{vT01}, 64, v{vT00}
    v_add_u32 v{vT10}, 65536, v{vT00}
    v_add_u32 v{vT11}, 65536, v{vT01}
    v_lshrrev_b32 v24, 3, v{vL}
    v_and_b32 v25, 7, v{vL}
    v_xor_b32 v25, v25, v24
    s_lshl_b32 s{S_T2}, s{S_W}, 3
    v_add_u32 v24, s{S_T2}, v24
    v_mul_u32_u24 v24, 1152, v24
    v_lshl_add_u32 v{vXo}, v25, 4, v24
    v_and_b32 v24, 31, v{vL}
    v_lshrrev_b32 v25, 5, v{vL}
    v_and_b32 v26, 7, v{vL}
    v_xor_b32 v25, v25, v26
    v_lshlrev_b32 v25, 4, v25
    v_lshl_add_u32 v25, v24, 7, v25
    s_lshl_b32 s{S_T2}, s{S_T0}, 13
    s_add_u32 s{S_T2}, s{S_T2}, 49152
    v_add_u32 v{XA}, s{S_T2}, v25
    v_xor_b32 v{XA+1}, 32, v{XA}
    v_xor_b32 v{XA+2}, 64, v{XA}
    v_xor_b32 v{XA+3}, 96, v{XA}
    v_add_u32 v{XA+4}, 65536, v{XA}
    v_add_u32 v{XA+5}, 65536, v{XA+1}
    v_add_u32 v{XA+6}, 65536, v{XA+2}
    v_add_u32 v{XA+7}, 65536, v{XA+3}
    s_lshl_b32 s{S_WL}, s{S_W}, 10
    v_and_b32 v24, 31, v{vL}
    v_and_b32 v25, 15, v{vL}
    s_lshl_b32 s{S_T2}, s{S_T1}, 3
    v_xor_b32 v25, s{S_T2}, v25
    v_lshlrev_b32 v25, 4, v25
    v_lshl_add_u32 v25, v24, 8, v25
    v_lshrrev_b32 v26, 5, v{vL}
    v_lshl_add_u32 v25, v26, 3, v25
    s_mul_i32 s{S_T2}, s{S_T0}, 49152
    v_add_u32 v{EW}, s{S_T2}, v25
    """)
    for k in range(1, 8): a(f"v_xor_b32 v{EW+k}, {16*k}, v{EW}")
    a(f"""
    s_lshl_b32 s{S_T3}, s{S_T1}, 12
    s_add_u32 s{S_T2}, s{S_T2}, s{S_T3}
    s_add_u32 s{S_T2}, s{S_T2}, 16384
    v_lshlrev_b32 v24, 6, v24
    v_lshl_add_u32 v24, v26, 4, v24
    v_add_u32 v{vVW}, s{S_T2}, v24
    v_lshlrev_b32 v{vRD}, 4, v{vtid}
    v_lshrrev_b32 v24, 4, v{vtid}
    v_and_b32 v25, 15, v{vtid}
    v_xor_b32 v25, v25, v24
    v_lshlrev_b32 v25, 4, v25
    v_lshl_add_u32 v{vGQ}, v24, 8, v25
    s_waitcnt lgkmcnt(0)
    s_and_b32 s{S_X+1}, s{S_X+1}, 0xffff
    s_mov_b32 s{S_X+2}, 2359296
    s_mov_b32 s{S_X+3}, 0x00020000
    s_mov_b32 s{S_TILE}, 0
    """)
    a.label("QKV_TILE")
    a(f"""
    ; S_TILE = round (0..2): rounds 0,1: h = rank/7, rb = 7*round + rank%7 ; round 2: rank<64: h = rank>>1, rb = 14 + (rank&1)
    s_cmp_ge_u32 s{S_TILE}, 3
    s_cbranch_scc1 QKV_DONE
    s_mul_i32 s{S_HD}, s{S_RANK}, 9363
    s_lshr_b32 s{S_HD}, s{S_HD}, 16
    s_mul_i32 s{S_T0}, s{S_HD}, 7
    s_sub_u32 s{S_RB}, s{S_RANK}, s{S_T0}
    s_mul_i32 s{S_T0}, s{S_TILE}, 7
    s_add_u32 s{S_RB}, s{S_RB}, s{S_T0}
    s_cmp_lg_u32 s{S_TILE}, 2
    s_cbranch_scc1 QKV_GO
    s_cmp_ge_u32 s{S_RANK}, 64
    s_cbranch_scc1 QKV_DONE
    s_lshr_b32 s{S_HD}, s{S_RANK}, 1
    s_and_b32 s{S_RB}, s{S_RANK}, 1
    s_add_u32 s{S_RB}, s{S_RB}, 14
    """)
    a.label("QKV_GO")
    a(f"""
    s_mul_i32 s{S_KB}, s{S_RB}, {128*1152}
    s_lshl_b32 s{S_WB_}, s{S_HD}, 8
    s_mul_i32 s{S_CK}, s{S_RB}, 4
    s_mul_i32 s{S_T0}, s{S_CK}, 7282
    s_lshr_b32 s{S_T0}, s{S_T0}, 16
    s_mul_i32 s{S_T0}, s{S_T0}, 9
    s_sub_u32 s{S_CK}, s{S_CK}, s{S_T0}
    """)
    def issue_list(buf):
        L_ = []
        L_.append(f"""
        s_lshl_b32 s{S_KOFF}, s{S_CK}, 7
        s_add_u32 s{S_KOFF}, s{S_KOFF}, s{S_KB}
        s_lshl_b32 s{S_WOFF}, s{S_CK}, 19
        s_add_u32 s{S_WOFF}, s{S_WOFF}, s{S_WB_}
        s_add_u32 s{S_CK}, s{S_CK}, 1
        s_cmp_eq_u32 s{S_CK}, 9
        s_cselect_b32 s{S_CK}, 0, s{S_CK}
        """)
        for u in range(4):
            L_.append(f"""
            s_add_u32 m0, s{S_WL}, {buf*65536 + 49152 + u*4096}
            s_add_u32 s{S_T1}, s{S_KOFF}, {u*32*1152}
            buffer_load_dwordx4 v{vXo}, {XR}, s{S_T1} offen lds
            """)
        for m in range(3):
            for u in range(4):
                L_.append(f"""
                s_add_u32 m0, s{S_WL}, {buf*65536 + m*16384 + u*4096}
                s_add_u32 s{S_T1}, s{S_WOFF}, {u*131072}
                buffer_load_dwordx4 v{vDo}, {SR[m]}, s{S_T1} offen lds
                """)
        return L_
    def wreads(buf, ks):
        for mt in range(2):
            b = XF[ks % 2] + 4 * mt
            a(f"ds_read_b128 v[{b}:{b+3}], v{XA + 4*buf + ks} offset:{4096*mt}")
        for m in range(3):
            for nt in range(2):
                b = WF[ks % 2] + 8 * m + 4 * nt
                ad = [[vT00, vT01], [vT10, vT11]][buf][nt]
                for hh in range(2):
                    a(f"ds_read_b64_tr_b16 v[{b+2*hh}:{b+2*hh+1}], v{ad} offset:{m*16384 + ks*4096 + hh*1024}")
    def compute(buf, first, dma):
        dma = list(dma)
        wreads(buf, 0)
        if dma: a(dma.pop(0))
        n = 0
        for ks in range(4):
            if ks < 3:
                wreads(buf, ks + 1)
                a("s_waitcnt lgkmcnt(14)")
            else:
                a("s_waitcnt lgkmcnt(0)")
            for m in range(3):
                for nt in range(2):
                    for mt in range(2):
                        w = vr(WF[ks % 2] + 8 * m + 4 * nt, 4); x = vr(XF[ks % 2] + 4 * mt, 4)
                        d = ar(acc(m, mt, nt), 16)
                        c = "0" if (first and ks == 0) else d
                        if m < 2: a(f"v_mfma_f32_32x32x16_bf16 {d}, {w}, {x}, {c}")
                        else: a(f"v_mfma_f32_32x32x16_bf16 {d}, {x}, {w}, {c}")
                        n += 1
                        if n % 2 == 0 and dma: a(dma.pop(0))
        assert not dma
    for x in issue_list(0): a(x)
    a("s_waitcnt vmcnt(0)\ns_barrier")
    rt(a, 112, S_TILE)
    compute(0, True, issue_list(1))
    a(f"s_mov_b32 s{S_CNT}, 0")
    a.label("QKV_LOOP")
    a("s_waitcnt vmcnt(0)\ns_barrier")
    compute(1, False, issue_list(0))
    a("s_waitcnt vmcnt(0)\ns_barrier")
    a(f"s_cmp_eq_u32 s{S_CNT}, 3")
    a("s_cbranch_scc1 QKV_LASTC")
    compute(0, False, issue_list(1))
    a(f"""
    s_add_u32 s{S_CNT}, s{S_CNT}, 1
    s_branch QKV_LOOP
    """)
    a.label("QKV_LASTC")
    compute(0, False, [])
    a(f"""
    s_nop 15
    s_barrier
    """)
    rt(a, 100, S_TILE)
    T = 32
    for m in range(2):
        for mt in range(2):
            for nt in range(2):
                base = acc(m, mt, nt)
                for r in range(16): a(f"v_accvgpr_read_b32 v{T+r}, a{base+r}")
                for q in range(4):
                    a(f"v_cvt_pk_bf16_f32 v{T+16+2*q}, v{T+4*q}, v{T+4*q+1}")
                    a(f"v_cvt_pk_bf16_f32 v{T+17+2*q}, v{T+4*q+2}, v{T+4*q+3}")
                for q in range(4):
                    a(f"ds_write_b64 v{EW+4*nt+q}, v[{T+16+2*q}:{T+17+2*q}] offset:{mt*24576 + m*8192}")
                T = 96 - T
    for mt in range(2):
        for nt in range(2):
            base = acc(2, mt, nt)
            for r in range(16): a(f"v_accvgpr_read_b32 v{T+r}, a{base+r}")
            for qp in range(2):
                a(f"v_cvt_pk_bf16_f32 v{T+16+4*qp}, v{T+4*qp}, v{T+4*qp+1}")
                a(f"v_cvt_pk_bf16_f32 v{T+17+4*qp}, v{T+4*qp+2}, v{T+4*qp+3}")
                a(f"v_cvt_pk_bf16_f32 v{T+18+4*qp}, v{T+8+4*qp}, v{T+8+4*qp+1}")
                a(f"v_cvt_pk_bf16_f32 v{T+19+4*qp}, v{T+8+4*qp+2}, v{T+8+4*qp+3}")
            for qp in range(2):
                a(f"ds_write_b128 v{vVW}, v[{T+16+4*qp}:{T+19+4*qp}] offset:{mt*24576 + nt*2048 + qp*32}")
            T = 96 - T
    a("s_waitcnt lgkmcnt(0)\ns_barrier")
    rt(a, 104, S_TILE)
    a(f"""
    s_lshl_b32 s{S_T0}, s{S_RB}, 2
    s_lshl_b32 s{S_T1}, s{S_HD}, 6
    s_add_u32 s{S_T0}, s{S_T0}, s{S_T1}
    s_lshl_b32 s{S_T0}, s{S_T0}, 13          ; ((4rb)*32 + h)*8192
    """)
    R = 32
    regions = [QX, KX, VX]
    n = 0
    for m in (1, 2, 0):
        for sg in range(4):
            for u in range(2):
                off = sg * 24576 + m * 8192 + u * 4096
                b = R + 4 * n
                if off < 65536: a(f"ds_read_b128 v[{b}:{b+3}], v{vRD} offset:{off}")
                else:
                    a(f"v_add_u32 v24, 65536, v{vRD}")
                    a(f"ds_read_b128 v[{b}:{b+3}], v24 offset:{off-65536}")
                n += 1
    n = 0
    for m in (1, 2, 0):
        for sg in range(4):
            for u in range(2):
                b = R + 4 * n
                if n % 4 == 0: a(f"s_waitcnt lgkmcnt({min(15, 24-n-4)})")
                a(f"s_add_u32 s{S_T1}, s{S_T0}, {regions[m] + sg*8192 + u*4096}")
                a(f"buffer_store_dwordx4 v[{b}:{b+3}], v{vGQ if m < 2 else vRD}, {WSR}, s{S_T1} offen sc1")
                n += 1
    a(f"""
    s_waitcnt vmcnt(0)
    s_barrier
    s_cmp_lg_u32 s{S_W}, 0
    s_cbranch_scc1 QKV_NEXT
    s_lshl_b32 s{S_T0}, 1, s{S_HD}
    s_lshl_b32 s{S_T1}, s{S_RB}, 6
    s_add_u32 s{S_T1}, s{S_T1}, {FLG+F_KV}
    v_mov_b32 v24, s{S_T0}
    v_mov_b32 v25, s{S_T1}
    s_mov_b64 exec, 1
    buffer_atomic_or v24, v25, {WSR}, 0 offen
    s_mov_b64 exec, -1
    """)
    a.label("QKV_NEXT")
    rt(a, 108, S_TILE)
    a(f"""
    s_add_u32 s{S_TILE}, s{S_TILE}, 1
    s_branch QKV_TILE
    """)
    a.label("QKV_DONE")
```

```python
from asmlib import *
from layout import *

class Q:
    def __init__(self, a, name, maxc):
        self.a = a; self.name = name; self.maxc = maxc; self.q = []
    def issue(self, tag):
        self.q.append(tag)
    def wait(self, tag):
        if tag not in self.q: return
        idx = max(i for i, t in enumerate(self.q) if t == tag)
        n = len(self.q) - 1 - idx
        assert n <= self.maxc, (self.name, tag, n)
        self.a(f"s_waitcnt {self.name}({n})")
        self.q = self.q[idx + 1:]
    def wait_all(self):
        self.a(f"s_waitcnt {self.name}(0)")
        self.q = []
    def has(self, tag):
        return tag in self.q

S_WS = 4; S_DBG = 8; S_A = 12; S_B = 16; S_C = 20; S_D = 24; S_OUT = 28
S_W = 32
S_H = 33
S_STEP = 34
S_T0 = 35; S_T1 = 36; S_T2 = 37; S_T3 = 38
S_MHG = 40
S_CEXP = 50
S_KXO = 52; S_VXO = 53; S_KMO = 54; S_VMO = 55; S_PWO = 56; S_RDO = 57; S_MEMW = 58; S_MEMR = 59
S_JOB = 60; S_FKM = 61; S_KXO2 = 62; S_MEMR3 = 63
S_PW1 = 42; S_PW2 = 43; S_PW3 = 44; S_PW4 = 45
OOB = 0x7ff00000
import sys
RT = '--rt' in sys.argv
DBGT = 0x7800000
def rt(a, idx, sidx=None):
    if not RT: return
    a(f"""
    s_memrealtime s[92:93]
    s_lshl_b32 s94, s2, 10
    s_add_u32 s94, s94, {DBGT + 4*idx}
    s_waitcnt lgkmcnt(0)
    """)
    if sidx is not None:
        a(f"s_lshl_b32 s95, s{sidx}, 2")
        a(f"s_add_u32 s94, s94, s95")
    a(f"""
    v_mov_b32 v22, s92
    v_mov_b32 v23, 0
    buffer_store_dword v22, v23, s[{S_WS}:{S_WS+3}], s94 offen
    """)

import os
W1_GAP = int(os.environ.get('W1_GAP', 0)); W2_GAP = int(os.environ.get('W2_GAP', 0))
W1_PRE = int(os.environ.get('W1_PRE', 0)); W2_PRE = int(os.environ.get('W2_PRE', 0)); NJ_PRE = int(os.environ.get('NJ_PRE', 0))
MEMAHEAD = int(os.environ.get('MEMAHEAD', 0))
ABID = int(os.environ.get('ABID', 1))
S_TCH = 47

def frag_regs():
    loc = {}
    regs = [ar(8 * i, 8) for i in range(32)] + [vr(80 + 8 * i, 8) for i in range(22)]
    ri = 0; m = 0
    order = [(T, kk) for kk in range(6) for T in range(6)]
    order += [(T, kk) for kk in range(6, 9) for T in range(4)]
    order += [(T, kk) for kk in range(6, 9) for T in (4, 5)]
    for n, (T, kk) in enumerate(order):
        if n % 3 == 2:
            loc[(1, T, kk)] = ("lds", m); m += 1
        else:
            loc[(1, T, kk)] = ("reg", regs[ri]); ri += 1
    for U in range(9):
        for ks in range(2):
            loc[(3, U, ks)] = ("reg", regs[ri]); ri += 1
    assert m == 18 and ri == 54
    return loc, order

def sub(reg8):
    k = reg8[0]; lo = int(reg8[2:reg8.index(":")])
    return k, lo

def rng(k, lo, n):
    return f"{k}[{lo}:{lo+n-1}]" if n > 1 else f"{k}{lo}"

def gen_team(a, dbg_time=False):
    loc, order = frag_regs()
    vIDX, vWl, vSh, vZw, vZr, vSw, vSrX, vSr0, vOr, vLane, vPW, vKX = range(12)
    vZero = vIDX
    AB = [12, 16, 20]
    ACC = [24, 28, 32, 36, 40, 44]
    WB = [48, 56]
    KXR = 64; VXR = 72
    WSR = f"s[{S_WS}:{S_WS+3}]"
    lg = Q(a, "lgkmcnt", 15); vm = Q(a, "vmcnt", 63)
    def stamp(i):
        if dbg_time: a(f"{'s_memrealtime' if '--real' in sys.argv else 's_memtime'} s[{64+2*i}:{65+2*i}]") if i < 10 else None

    a.label("TEAM")
    rt(a, 0)
    stamp(10)
    a(f"v_and_b32 v{vLane}, 63, v0")
    a(f"v_mov_b32 v79, v0")
    L = f"v{vLane}"
    a(f"""
    v_and_b32 v12, 15, {L}            ; i
    v_lshrrev_b32 v13, 4, {L}         ; g
    v_and_b32 v14, 7, {L}             ; i&7
    v_bfe_u32 v15, {L}, 3, 1          ; i>>3
    v_lshrrev_b32 v16, 5, {L}         ; lane>>5 = g>>1
    v_and_b32 v17, 1, v13             ; g&1
    v_and_b32 v22, 1, {L}             ; hf = i&1
    v_lshrrev_b32 v23, 1, v12         ; t = i>>1
    s_mul_i32 s{S_T0}, s{S_W}, {L_REG}
    s_add_u32 s{S_T0}, s{S_T0}, {L_SC}        ; scratch region of this wave
    v_mov_b32 v18, {0x44440000 if ABID else 0x00104444}
    v_mov_b32 v19, {0xeeee0000 if ABID else 0x0010eeee}
    v_cmp_lt_u32 vcc, 0, v22
    v_cndmask_b32 v{vIDX}, v18, v19, vcc
    s_mul_i32 s{S_T1}, s{S_W}, 36864
    v_lshlrev_b32 v18, 4, {L}
    v_add_u32 v{vWl}, s{S_T1}, v18
    v_lshlrev_b32 v20, 8, v13
    v_lshl_add_u32 v20, v22, 7, v20
    v_lshl_add_u32 v20, v23, 4, v20
    v_add_u32 v{vSh}, {L_SH}, v20
    ; vZw = region + n*32 + g*4
    v_lshlrev_b32 v20, 5, v12
    v_lshl_add_u32 v20, v13, 2, v20
    v_add_u32 v{vZw}, s{S_T0}, v20
    v_bfe_u32 v20, {L}, 2, 2          ; r
    v_lshl_add_u32 v20, v13, 3, v20   ; 8g+r
    v_lshlrev_b32 v20, 5, v20
    v_and_b32 v21, 3, {L}
    v_lshl_add_u32 v20, v21, 3, v20
    v_add_u32 v{vZr}, s{S_T0}, v20
    v_lshl_add_u32 v20, v13, 3, v14   ; g*8+(i&7)
    v_lshlrev_b32 v20, 4, v20
    v_add_u32 v21, s{S_T0}, v20
    v_mov_b32 v19, 0x40000
    v_cmp_lt_u32 vcc, 0, v15          ; i>=8
    v_cndmask_b32 v{vSw}, v19, v21, vcc
    v_mov_b32 v19, 1280
    v_mov_b32 v21, 768
    v_cndmask_b32 v19, v19, v21, vcc
    v_add3_u32 v{vSrX}, v20, v19, 0
    v_add_u32 v{vSrX}, {L_SC}, v{vSrX}
    v_lshl_add_u32 v20, v16, 3, v14
    v_lshlrev_b32 v20, 4, v20
    v_lshl_add_u32 v20, v17, 3, v20
    v_add_u32 v{vSr0}, {L_SC}, v20
    v_lshl_add_u32 v20, v17, 1, v22
    v_lshl_add_u32 v20, v20, 3, v23
    v_lshlrev_b32 v20, 4, v20
    v_mul_u32_u24 v21, {L_REG}, v16
    v_add3_u32 v{vOr}, v20, v21, 0
    v_add_u32 v{vOr}, {L_SC+256}, v{vOr}
    ; vPW = (18w + (n>>2))*4096 + ((n>>1)&1)*64 + g*16 + (n&1)*8
    s_mul_i32 s{S_T1}, s{S_W}, 18
    v_lshrrev_b32 v20, 2, v12
    v_add_u32 v20, s{S_T1}, v20
    v_lshlrev_b32 v20, 12, v20
    v_bfe_u32 v21, v12, 1, 1
    v_lshl_add_u32 v20, v21, 6, v20
    v_lshl_add_u32 v20, v13, 4, v20
    v_lshl_add_u32 v{vPW}, v22, 3, v20
    ; vKX = i*256 + w*64 + g*16
    v_lshlrev_b32 v20, 8, v12
    v_lshl_add_u32 v20, v13, 4, v20
    s_lshl_b32 s{S_T1}, s{S_W}, 6
    v_add_u32 v{vKX}, s{S_T1}, v20
    s_mov_b32 s{S_MHG}, 0x00f000f0
    s_mov_b32 s{S_MHG+1}, 0x00f000f0
    s_mov_b32 s{S_CEXP}, 0x3e0293ee
    """)
    a(f"""
    v_lshrrev_b32 v24, 4, v79         ; rho0
    v_and_b32 v25, 15, v79            ; cc
    v_and_b32 v26, 7, v24
    v_bfe_u32 v27, v24, 3, 1
    v_lshlrev_b32 v27, 1, v27
    v_xor_b32 v26, v26, v27           ; key1
    v_lshlrev_b32 v26, 1, v26
    v_xor_b32 v26, v25, v26           ; pos
    v_lshlrev_b32 v26, 4, v26
    v_lshl_add_u32 v26, v24, 8, v26
    v_add_u32 v28, {L_SH}, v26
    v_and_b32 v27, 1, v24
    v_bfe_u32 v26, v24, 2, 1
    v_lshl_add_u32 v27, v26, 1, v27
    v_lshlrev_b32 v27, 1, v27
    v_xor_b32 v26, v25, v27
    v_lshlrev_b32 v26, 4, v26
    v_lshl_add_u32 v26, v24, 8, v26
    v_add_u32 v29, {L_SH}, v26
    v_xor_b32 v30, 128, v29           ; u odd
    v_and_b32 v26, 12, v25
    v_bfe_u32 v31, v25, 1, 1
    v_or_b32 v26, v26, v31
    v_xor_b32 v26, v26, v27
    v_lshlrev_b32 v26, 4, v26
    v_and_b32 v31, 1, v25
    v_lshl_add_u32 v26, v31, 3, v26
    v_lshl_add_u32 v26, v24, 8, v26
    v_add_u32 v18, {L_SH}, v26
    v_xor_b32 v19, 32, v18
    v_xor_b32 v20, 128, v18
    v_xor_b32 v21, 160, v18
    v_lshlrev_b32 v31, 13, v24
    v_lshl_add_u32 v31, v25, 4, v31
    v_mul_u32_u24 v26, 1152, v24
    v_lshrrev_b32 v27, 2, v25
    v_mul_u32_u24 v27, 288, v27
    v_and_b32 v25, 3, v25
    v_lshl_add_u32 v27, v25, 4, v27
    v_add_u32 v79, v26, v27
    """)
    a(f"""
    v_bfe_u32 v32, {L}, 2, 2          ; r
    v_and_b32 v33, 3, {L}             ; c
    v_lshrrev_b32 v34, 1, v32         ; r>>1
    v_and_b32 v35, 1, v32             ; r&1
    v_lshrrev_b32 v36, 1, v13         ; gb>>1
    s_lshl_b32 s{S_T1}, s{S_W}, 2     ; 4w
    """)
    RA1 = [40, 41, 42, 43]
    RA3 = [44, 45, 46, 47]
    for mp in range(2):
        a(f"""
        v_lshl_add_u32 v37, v17, 2, v35       ; 4*(gb&1) + (r&1)
        v_add_u32 v37, {2*mp}, v37            ; 2j + (r&1)
        v_lshl_add_u32 v38, v34, 3, v37       ; rho15
        v_lshl_add_u32 v38, v36, 4, v38       ; + 16*(gb>>1)
        v_lshlrev_b32 v39, 1, v34
        v_xor_b32 v37, v37, v39               ; key
        v_lshlrev_b32 v37, 1, v37
        v_lshrrev_b32 v39, 1, v33
        v_add_u32 v39, s{S_T1}, v39           ; 4w + (c>>1)
        v_xor_b32 v37, v37, v39
        v_lshlrev_b32 v37, 4, v37
        v_lshl_add_u32 v37, v38, 8, v37
        v_and_b32 v39, 1, v33
        v_lshl_add_u32 v37, v39, 3, v37
        v_add_u32 v{RA1[2*mp]}, {L_SH}, v37
        v_xor_b32 v{RA1[2*mp+1]}, 32, v{RA1[2*mp]}
        """)
        a(f"""
        v_lshl_add_u32 v38, v17, 4, v35
        v_lshl_add_u32 v38, v36, 3, v38
        v_lshl_add_u32 v38, v34, 2, v38
        v_add_u32 v38, {2*mp}, v38
        v_lshl_add_u32 v37, v34, 1, v35
        v_lshl_add_u32 v37, v17, 2, v37       ; key
        v_lshlrev_b32 v37, 1, v37
        v_lshrrev_b32 v39, 1, v33
        v_add_u32 v39, s{S_T1}, v39
        v_xor_b32 v37, v37, v39
        v_lshlrev_b32 v37, 4, v37
        v_lshl_add_u32 v37, v38, 8, v37
        v_and_b32 v39, 1, v33
        v_lshl_add_u32 v37, v39, 3, v37
        v_add_u32 v{RA3[2*mp]}, {L_SH}, v37
        v_xor_b32 v{RA3[2*mp+1]}, 32, v{RA3[2*mp]}
        """)
    a(f"""
    v_mov_b32 v39, v79
    v_mov_b32 v32, v18
    v_mov_b32 v33, v19
    v_mov_b32 v34, v20
    v_mov_b32 v35, v21
    s_mov_b32 s{S_T2}, 0x05040100
    s_mov_b32 s{S_T3}, 0x07060302
    """)
    stages = []
    for mat in range(3):
        for kk in range(9):
            stages.append((1, mat, kk))
    for ks in range(2):
        for up in range(5):
            stages.append((3, ks, up))
    LB = [48, 64]
    TMPF = 12
    SRDS = [S_A, S_B, S_C]
    def issue_loads(n):
        kind, x, y = stages[n]
        b = LB[n % 2]
        if kind == 1:
            a(f"s_lshl_b32 s{S_T1}, s{S_H}, 8")
            a(f"s_add_u32 s{S_T1}, s{S_T1}, {y*64*8192}")
            for u in range(4):
                a(f"buffer_load_dwordx4 v[{b+4*u}:{b+4*u+3}], v31, s[{SRDS[x]}:{SRDS[x]+3}], s{S_T1} offen")
                vm.issue(("ld", n))
                if u < 3: a(f"s_add_u32 s{S_T1}, s{S_T1}, {16*8192}")
        else:
            a(f"s_mul_i32 s{S_T1}, s{S_H}, 147456")
            a(f"s_add_u32 s{S_T1}, s{S_T1}, {x*64*1152 + y*64}")
            for u in range(4):
                a(f"buffer_load_dwordx4 v[{b+4*u}:{b+4*u+3}], v39, s[{S_D}:{S_D+3}], s{S_T1} offen")
                vm.issue(("ld", n))
                if u < 3: a(f"s_add_u32 s{S_T1}, s{S_T1}, {16*1152}")
    vm.q = []
    issue_loads(0); issue_loads(1)
    for n, (kind, x, y) in enumerate(stages):
        b = LB[n % 2]
        vm.wait(("ld", n))
        for u in range(4):
            d = b + 4 * u
            if kind == 3 and y < 4:
                a(f"""
                v_perm_b32 v12, v{d+1}, v{d}, s{S_T2}
                v_perm_b32 v13, v{d+3}, v{d+2}, s{S_T2}
                v_perm_b32 v14, v{d+1}, v{d}, s{S_T3}
                v_perm_b32 v15, v{d+3}, v{d+2}, s{S_T3}
                ds_write_b64 v{32 + 2*(u%2)}, v[12:13] offset:{4096*u}
                ds_write_b64 v{33 + 2*(u%2)}, v[14:15] offset:{4096*u}
                """)
            else:
                wa = 28 if kind == 1 else (29 if u % 2 == 0 else 30)
                a(f"ds_write_b128 v{wa}, v[{d}:{d+3}] offset:{4096*u}")
        a("s_waitcnt lgkmcnt(0)")
        a("s_barrier")
        if n + 2 < len(stages): issue_loads(n + 2)
        RA = RA1 if kind == 1 else RA3
        ntiles = 2 if not (kind == 3 and y == 4) else 1
        wb = []
        for nt in range(ntiles):
            key = (1, 2 * x + nt, y) if kind == 1 else (3, 2 * y + nt, x)
            where, what = loc[key]
            if where == "reg":
                k, lo = sub(what)
            else:
                k, lo = "v", TMPF + 8 * nt
                wb.append((what, lo))
            for hb in range(2):
                for mp in range(2):
                    a(f"ds_read_b64_tr_b16 {rng(k, lo + 4*hb + 2*mp, 2)}, v{RA[2*mp+nt]} offset:{8192*hb}")
        a("s_waitcnt lgkmcnt(0)")
        for (m, lo) in wb:
            a(f"ds_write_b128 v{vWl}, v[{lo}:{lo+3}] offset:{2048*m}")
            a(f"ds_write_b128 v{vWl}, v[{lo+4}:{lo+7}] offset:{2048*m+1024}")
        a("s_barrier")
    stamp(11)
    rt(a, 1)
    a(f"""
    v_mov_b32 v24, -1
    v_mov_b32 v25, -1
    v_mov_b32 v26, -1
    v_mov_b32 v27, -1
    v_lshl_add_u32 v29, s{S_W}, 6, v{vLane}
    v_lshlrev_b32 v28, 4, v29
    s_mul_i32 s{S_T1}, s{S_H}, 18432
    s_add_u32 s{S_T1}, s{S_T1}, {PART}
    """)
    for u in range(4):
        a(f"buffer_store_dwordx4 v[24:27], v28, {WSR}, s{S_T1} offen")
        a(f"s_add_u32 s{S_T1}, s{S_T1}, 4096")
    a(f"""
    v_cmp_gt_u32 vcc, 128, v29
    s_mov_b64 exec, vcc
    buffer_store_dwordx4 v[24:27], v28, {WSR}, s{S_T1} offen
    v_cmp_gt_u32 vcc, 54, v29
    s_mov_b64 exec, vcc
    s_mul_i32 s{S_T1}, s{S_H}, 864
    s_add_u32 s{S_T1}, s{S_T1}, {MEM+9216}
    buffer_store_dwordx4 v[24:27], v28, {WSR}, s{S_T1} offen
    s_mov_b64 exec, -1
    """)
    if dbg_time:
        a(f"""
        s_lshl_b32 s{S_T1}, s{S_H}, 14
        s_add_u32 s{S_T1}, s{S_T1}, 0x7000000
        """)
        for u in range(4):
            a(f"buffer_store_dwordx4 v[24:27], v28, {WSR}, s{S_T1} offen")
            a(f"s_add_u32 s{S_T1}, s{S_T1}, 4096")
    if not MEMAHEAD:
        a(f"""
        s_mul_i32 s{S_T1}, s{S_H}, 18720
        s_add_u32 s{S_T1}, s{S_T1}, {MEM}
        """)
        for u in range(4):
            a(f"buffer_store_dwordx4 v[24:27], v28, {WSR}, s{S_T1} offen")
            a(f"s_add_u32 s{S_T1}, s{S_T1}, 4096")
        a(f"""
        v_cmp_gt_u32 vcc, 146, v29
        s_mov_b64 exec, vcc
        buffer_store_dwordx4 v[24:27], v28, {WSR}, s{S_T1} offen
        s_mov_b64 exec, -1
        """)
    a(f"""
    v_and_b32 v12, 7, {L}
    v_mul_u32_u24 v12, 1152, v12
    v_lshrrev_b32 v13, 3, {L}
    v_lshl_add_u32 v12, v13, 4, v12    ; t*1152 + (lane>>3)*16
    s_lshl_b32 s{S_T1}, s{S_W}, 8
    s_lshl_b32 s{S_T2}, s{S_W}, 11
    v_lshlrev_b32 v14, 4, {L}
    v_add_u32 v14, {L_SH}, v14
    v_add_u32 v13, s{S_T2}, v14
    s_load_dwordx2 s[{S_A}:{S_A+1}], s[0:1], 80
    s_waitcnt lgkmcnt(0)
    s_and_b32 s{S_A+1}, s{S_A+1}, 0xffff
    s_mov_b32 s{S_A+2}, 9216
    s_mov_b32 s{S_A+3}, 0x00020000
    buffer_load_dwordx4 v[16:19], v12, s[{S_A}:{S_A+3}], s{S_T1} offen
    buffer_load_dwordx4 v[20:23], v12, s[{S_A}:{S_A+3}], s{S_T1} offen offset:128
    buffer_load_dwordx4 v[24:27], v12, s[{S_A}:{S_A+3}], 0 offen offset:1024
    s_waitcnt vmcnt(0)
    ds_write_b128 v13, v[16:19]
    ds_write_b128 v13, v[20:23] offset:1024
    ds_write_b128 v14, v[24:27] offset:8192
    """)
    vm.q = []
    a(f"""
    s_waitcnt lgkmcnt(0)
    s_barrier
    s_cmp_lg_u32 s{S_W}, 0
    s_cbranch_scc1 TEAM_BAR_DONE
    v_mov_b32 v12, 1
    v_mov_b32 v13, {D_TEAMBAR*4}
    s_mov_b64 exec, 1
    buffer_atomic_add v12, v13, s[{S_DBG}:{S_DBG+3}], 0 offen
    """)
    a.label("TEAM_BAR_POLL")
    a(f"""
    buffer_load_dword v14, v13, s[{S_DBG}:{S_DBG+3}], 0 offen sc1
    s_waitcnt vmcnt(0)
    v_readfirstlane_b32 s{S_T1}, v14
    s_cmp_lt_u32 s{S_T1}, 32
    s_cbranch_scc1 TEAM_BAR_POLL
    """)
    a(f"v_mov_b32 v13, {FLG+F_KV}")
    a.label("TEAM_KV0_POLL")
    a(f"""
    buffer_load_dword v14, v13, {WSR}, 0 offen sc1
    s_waitcnt vmcnt(0)
    v_readfirstlane_b32 s{S_T1}, v14
    s_lshr_b32 s{S_T1}, s{S_T1}, s{S_H}
    s_bitcmp1_b32 s{S_T1}, 0
    s_cbranch_scc0 TEAM_KV0_POLL
    s_mov_b64 exec, -1
    """)
    a.label("TEAM_BAR_DONE")
    a("s_barrier")
    rt(a, 2)
    a(f"""
    s_mov_b32 s{S_STEP}, 0
    s_lshl_b32 s{S_T1}, s{S_H}, 19
    s_add_u32 s{S_KXO}, s{S_T1}, {KX}
    s_add_u32 s{S_KXO2}, s{S_KXO}, 4096
    s_add_u32 s{S_VXO}, s{S_T1}, {VX}
    s_lshl_b32 s{S_T1}, s{S_H}, 18
    s_add_u32 s{S_KMO}, s{S_T1}, {KM}
    s_lshl_b32 s{S_T1}, s{S_H}, 17
    s_add_u32 s{S_VMO}, s{S_T1}, {VM}
    s_lshl_b32 s{S_T1}, s{S_H}, 7
    s_add_u32 s{S_PWO}, s{S_T1}, {PART}
    s_add_u32 s{S_PW1}, s{S_PWO}, 16384
    s_add_u32 s{S_PW2}, s{S_PWO}, 32768
    s_add_u32 s{S_PW3}, s{S_PWO}, 49152
    s_mul_i32 s{S_T1}, s{S_W}, {18*4096}
    s_add_u32 s{S_PW4}, s{S_PWO}, 65536
    s_add_u32 s{S_PW4}, s{S_PW4}, s{S_T1}
    s_mov_b32 s96, 0
    s_mov_b32 s97, 0
    s_lshl_b32 s{S_JOB}, s{S_W}, 5
    s_add_u32 s{S_JOB}, s{S_JOB}, s{S_H}
    s_lshl_b32 s{S_T1}, s{S_JOB}, 12
    s_add_u32 s{S_RDO}, s{S_T1}, {PART}
    s_lshl_b32 s{S_T1}, s{S_JOB}, 7
    s_add_u32 s{S_MEMW}, s{S_T1}, {MEM+9216}
    s_lshl_b32 s{S_T1}, s{S_W}, 11
    s_add_u32 s{S_MEMR}, s{S_T1}, {MEM+9216}
    s_lshl_b32 s{S_T1}, s{S_W}, 8
    s_add_u32 s{S_MEMR3}, s{S_T1}, {MEM+9216+8192}
    s_lshl_b32 s{S_T1}, s{S_H}, 4
    s_lshl_b32 s{S_T2}, s{S_W}, 2
    s_add_u32 s{S_FKM}, s{S_T1}, s{S_T2}
    s_add_u32 s{S_FKM}, s{S_FKM}, {FLG+F_KM}
    """)
    def vx_addr(dst):
        a(f"""
        v_bfe_u32 v{dst}, v{vWl}, 4, 4
        v_lshl_add_u32 v{dst}, s{S_W}, 5, v{dst}
        v_lshlrev_b32 v{dst}, 6, v{dst}
        v_bfe_u32 v{dst+1}, v{vWl}, 8, 2
        v_lshl_add_u32 v{dst}, v{dst+1}, 4, v{dst}
        """)
    def kx_load():
        a(f"buffer_load_dwordx4 v[{KXR}:{KXR+3}], v{vKX}, {WSR}, s{S_KXO} offen")
        a(f"buffer_load_dwordx4 v[{KXR+4}:{KXR+7}], v{vKX}, {WSR}, s{S_KXO2} offen")
    def vx_load(ad):
        a(f"buffer_load_dwordx4 v[{VXR}:{VXR+3}], v{ad}, {WSR}, s{S_VXO} offen")
        a(f"buffer_load_dwordx4 v[{VXR+4}:{VXR+7}], v{ad}, {WSR}, s{S_VXO} offen offset:1024")
    def zero4(r):
        a(f"ds_read_b128 v[{r}:{r+3}], v{vIDX} offset:0" if False else f"ds_read_b128 v[{r}:{r+3}], v{vZero}")
        lg.issue("zero")
    kx_load(); vx_addr(12); vx_load(12)
    a(f"""
    s_add_u32 s{S_KXO}, s{S_KXO}, 8192
    s_add_u32 s{S_KXO2}, s{S_KXO2}, 8192
    s_add_u32 s{S_VXO}, s{S_VXO}, 8192
    """)
    for r in range(24): a(f"v_mov_b32 v{ACC[0]+r}, 0")
    a("s_waitcnt vmcnt(0)")

    def w_read(m):
        b = WB[m % 2]
        a(f"ds_read_b128 v[{b}:{b+3}], v{vWl} offset:{2048*m}"); lg.issue(("w", m))
        a(f"ds_read_b128 v[{b+4}:{b+7}], v{vWl} offset:{2048*m+1024}"); lg.issue(("w", m))
    def a_read(kk):
        b = AB[kk % 3]
        a(f"ds_read_b128 v[{b}:{b+3}], v{vSh} offset:{1024*kk}"); lg.issue(("a", kk))
    w_read(0); w_read(1)
    a("s_waitcnt lgkmcnt(0)")
    a.label("TEAM_STEP")
    lg.q = []
    stamp(0)
    a_read(0); a_read(1); a_read(2)
    def smf(T, kk):
        where, what = loc[(1, T, kk)]
        ab = AB[kk % 3]
        need = [t for t in (("a", kk), ("w", what) if where == "lds" else None) if t and lg.has(t)]
        if need:
            last = max(need, key=lambda t: max(i for i, x in enumerate(lg.q) if x == t))
            lg.wait(last)
        b = vr(WB[what % 2], 8) if where == "lds" else what
        a(f"v_smfmac_f32_16x16x64_bf16 v[{ACC[T]}:{ACC[T]+3}], v[{ab}:{ab+3}], {b}, v{vIDX}{' abid:1' if ABID else ''}")
        if where == "lds" and what + 2 < 18:
            w_read(what + 2)
    for n, (T, kk) in enumerate(order[:48]):
        smf(T, kk)
        if kk < 6 and T == 5: a_read(kk + 3)
    stamp(1)
    q0, q1, k0, k1 = ACC[0:4]
    side = []
    S = side.append
    for (qq, kq, off) in ((q0, k0, 0), (q1, k1, 128)):
        S(f"v_add_f32 v{qq}, v{qq}, v{qq+1}")
        S(f"v_add_f32 v{qq+2}, v{qq+2}, v{qq+3}")
        S(f"v_cvt_pk_bf16_f32 v{qq}, v{qq}, v{qq+2}")
        S(f"v_add_f32 v{kq}, v{kq}, v{kq+1}")
        S(f"v_add_f32 v{kq+2}, v{kq+2}, v{kq+3}")
        S(f"v_cvt_pk_bf16_f32 v{kq}, v{kq}, v{kq+2}")
        S(("ds", f"ds_write2_b32 v{vZw}, v{kq}, v{qq} offset0:{off} offset1:{off+4}", "zw"))
    Z = q1
    S(("ds", f"ds_read_b64_tr_b16 v[{Z}:{Z+1}], v{vZr}", "z"))
    S(("ds", f"ds_read_b64_tr_b16 v[{Z+2}:{Z+3}], v{vZr} offset:128", "z"))
    def emit_side(n):
        k = 0
        while side and k < n:
            it = side.pop(0)
            if isinstance(it, str): a(it)
            elif it[0] == "ds": a(it[1]); lg.issue(it[2])
            k += 1
    cnt = [0, 2, 4, 5, 5, 0]
    for n, (T, kk) in enumerate(order[48:]):
        smf(T, kk)
        emit_side(cnt[n])
    emit_side(1000)
    v0_, v1_ = ACC[4], ACC[5]
    VMB = 48
    T0, T1, T2 = q0, k0, k1
    vx_addr(60)
    a(f"""
    v_lshrrev_b32 v61, 2, v60
    v_mov_b32 v{VMB+1}, 0
    v_mov_b32 v{VMB+3}, 0
    """)
    lg.wait("z")
    a(f"""
    v_mfma_f32_16x16x32_bf16 v[{T1}:{T1+3}], v[{KXR}:{KXR+3}], v[{Z}:{Z+3}], 0
    v_mfma_f32_16x16x32_bf16 v[{T2}:{T2+3}], v[{KXR+4}:{KXR+7}], v[{Z}:{Z+3}], 0
    v_mfma_f32_16x16x32_bf16 v[{T0}:{T0+3}], v[{Z}:{Z+3}], v[{Z}:{Z+3}], 0
    v_add_f32 v{v0_}, v{v0_}, v{v0_+1}
    v_add_f32 v{v0_+2}, v{v0_+2}, v{v0_+3}
    v_add_f32 v{v1_}, v{v1_}, v{v1_+1}
    v_add_f32 v{v1_+2}, v{v1_+2}, v{v1_+3}
    v_cvt_pk_bf16_f32 v{VMB}, v{v0_}, v{v0_+2}
    v_cvt_pk_bf16_f32 v{VMB+2}, v{v1_}, v{v1_+2}
    ds_write_b128 v{vSw}, v[{T1}:{T1+3}] offset:768
    ds_write_b128 v{vSw}, v[{T2}:{T2+3}] offset:1280
    ds_write_b128 v{vSw}, v[{T0}:{T0+3}]
    buffer_store_dwordx4 v[{Z}:{Z+3}], v{vKX}, {WSR}, s{S_KMO} offen sc1
    """)
    kx_load()
    stamp(2)
    lg.wait_all()
    a("s_barrier")
    stamp(3)
    X = 12; TZ = 28
    for w2 in range(4):
        a(f"ds_read_b128 v[{X+4*w2}:{X+4*w2+3}], v{vSrX} offset:{L_REG*w2}"); lg.issue(("x", w2))
        a(f"ds_read_b64 v[{TZ+2*w2}:{TZ+2*w2+1}], v{vSr0} offset:{L_REG*w2}"); lg.issue(("x", w2))
    A3 = [36, 40, 44, 12, 16, 20, 24, 48, 52]
    for U in range(3): zero4(A3[U])
    a(f"""
    buffer_store_dword v{VMB}, v61, {WSR}, s{S_VMO} offen sc1
    buffer_store_dword v{VMB+2}, v61, {WSR}, s{S_VMO} offen offset:256 sc1
    """)
    lg.wait(("x", 1))
    a(f"""
    v_pk_add_f32 v[{X}:{X+1}], v[{X}:{X+1}], v[{X+4}:{X+5}]
    v_pk_add_f32 v[{X+2}:{X+3}], v[{X+2}:{X+3}], v[{X+6}:{X+7}]
    v_pk_add_f32 v[{TZ}:{TZ+1}], v[{TZ}:{TZ+1}], v[{TZ+2}:{TZ+3}]
    """)
    lg.wait(("x", 3))
    a(f"""
    v_pk_add_f32 v[{X+8}:{X+9}], v[{X+8}:{X+9}], v[{X+12}:{X+13}]
    v_pk_add_f32 v[{X+10}:{X+11}], v[{X+10}:{X+11}], v[{X+14}:{X+15}]
    v_pk_add_f32 v[{TZ+4}:{TZ+5}], v[{TZ+4}:{TZ+5}], v[{TZ+6}:{TZ+7}]
    v_pk_add_f32 v[{X}:{X+1}], v[{X}:{X+1}], v[{X+8}:{X+9}]
    v_pk_add_f32 v[{X+2}:{X+3}], v[{X+2}:{X+3}], v[{X+10}:{X+11}]
    v_pk_add_f32 v[{X+4}:{X+5}], v[{TZ}:{TZ+1}], v[{TZ+4}:{TZ+5}]
    """)
    Mx = X + 6; Tm = X + 7
    PX = 28; PM = 32
    O = 52
    a(f"""
    v_max3_f32 v{Mx}, v{X}, v{X+1}, v{X+2}
    v_max3_f32 v{Tm}, v{X+3}, v{X+4}, v{X+5}
    v_max_f32 v{Mx}, v{Mx}, v{Tm}
    """)
    zero4(20); zero4(24)
    a(f"""
    v_max_f32_dpp v{Mx}, v{Mx}, v{Mx} row_ror:8 row_mask:0xf bank_mask:0xf
    v_mov_b32 v{Tm}, v{Mx}
    v_mov_b32 v{PM+1}, 0
    s_nop 0
    v_permlane16_swap_b32 v{Tm}, v{Mx}
    v_max_f32 v{Mx}, v{Mx}, v{Tm}
    v_mov_b32 v{Tm}, v{Mx}
    s_nop 1
    v_permlane32_swap_b32 v{Tm}, v{Mx}
    v_max_f32 v{Mx}, v{Mx}, v{Tm}
    v_mul_f32 v{Mx}, s{S_CEXP}, v{Mx}
    """)
    for r in range(6): a(f"v_fma_f32 v{X+r}, v{X+r}, s{S_CEXP}, -v{Mx}")
    for r in range(6): a(f"v_exp_f32 v{X+r}, v{X+r}")
    a(f"""
    v_cvt_pk_bf16_f32 v{PM}, v{X+4}, v{X+5}
    v_cvt_pk_bf16_f32 v{PX}, v{X}, v{X+1}
    v_cvt_pk_bf16_f32 v{PX+1}, v{X+2}, v{X+3}
    v_add_f32 v{Mx}, v{X+4}, v{X+5}
    v_mfma_f32_16x16x16_bf16 v[{O}:{O+3}], v[{VMB}:{VMB+1}], v[{PM}:{PM+1}], 0
    v_mov_b32_dpp v{PX+2}, v{PX} row_ror:8 row_mask:0xf bank_mask:0xf
    v_mov_b32_dpp v{PX+3}, v{PX+1} row_ror:8 row_mask:0xf bank_mask:0xf
    v_mfma_f32_16x16x16_bf16 v[{O+4}:{O+7}], v[{VMB+2}:{VMB+3}], v[{PM}:{PM+1}], 0
    v_add_f32 v{Tm}, v{X}, v{X+1}
    v_fma_f32 v{Mx}, v{Mx}, 0.5, v{Tm}
    v_add_f32 v{Tm}, v{X+2}, v{X+3}
    v_add_f32 v{Mx}, v{Mx}, v{Tm}
    v_mfma_f32_16x16x32_bf16 v[{O}:{O+3}], v[{VXR}:{VXR+3}], v[{PX}:{PX+3}], v[{O}:{O+3}]
    v_mfma_f32_16x16x32_bf16 v[{O+4}:{O+7}], v[{VXR+4}:{VXR+7}], v[{PX}:{PX+3}], v[{O+4}:{O+7}]
    v_add_f32_dpp v{Mx}, v{Mx}, v{Mx} row_ror:8 row_mask:0xf bank_mask:0xf
    v_mov_b32 v{Tm}, v{Mx}
    """)
    zero4(12); zero4(48)
    a(f"""
    v_permlane16_swap_b32 v{Tm}, v{Mx}
    v_add_f32 v{Mx}, v{Mx}, v{Tm}
    v_mov_b32 v{Tm}, v{Mx}
    """)
    vx_load(60)
    a(f"""
    v_permlane32_swap_b32 v{Tm}, v{Mx}
    v_add_f32 v{Mx}, v{Mx}, v{Tm}
    v_rcp_f32 v{Mx}, v{Mx}
    s_cmp_eq_u32 s{S_STEP}, 63
    v_mov_b32 v{Tm}, v{Mx}
    """)
    for p in range(4): a(f"v_pk_mul_f32 v[{O+2*p}:{O+2*p+1}], v[{O+2*p}:{O+2*p+1}], v[{Mx}:{Tm}]")
    OP = 60
    for p in range(4): a(f"v_cvt_pk_bf16_f32 v{OP+p}, v{O+2*p}, v{O+2*p+1}")
    a(f"ds_write_b128 v{vSw}, v[{OP}:{OP+3}] offset:256")
    zero4(16); zero4(52)
    stamp(4)
    a("s_waitcnt lgkmcnt(0)")
    a("s_barrier")
    stamp(5)
    AO = 56
    a(f"ds_read_b128 v[{AO}:{AO+3}], v{vOr}")
    a(f"ds_read_b128 v[{AO+4}:{AO+7}], v{vOr} offset:{2*L_REG}")
    a("s_cbranch_scc1 TEAM_LAST")
    a(f"""
    v_bfe_u32 v28, v{vWl}, 7, 1
    v_lshlrev_b32 v28, 12, v28
    v_bfe_u32 v29, v{vWl}, 6, 1
    v_lshl_add_u32 v28, v29, 6, v28
    v_bfe_u32 v29, v{vWl}, 8, 2
    v_lshl_add_u32 v28, v29, 4, v28
    v_bfe_u32 v29, v{vWl}, 5, 1
    v_lshl_add_u32 v28, v29, 3, v28
    v_bfe_u32 v29, v{vWl}, 4, 1
    v_lshl_add_u32 v28, v29, 30, v28
    """)
    a("s_waitcnt lgkmcnt(0)" if dbg_time else "s_waitcnt lgkmcnt(1)")
    PWS = [S_PWO, S_PW1, S_PW2, S_PW3]
    def pair_out(pp):
        Ua, Ub = A3[2 * pp], A3[2 * pp + 1]
        return [f"v_add_f32 v{Ua}, v{Ua}, v{Ua+1}",
             f"v_add_f32 v{Ua+2}, v{Ua+2}, v{Ua+3}",
             f"v_add_f32 v{Ub}, v{Ub}, v{Ub+1}",
             f"v_add_f32 v{Ub+2}, v{Ub+2}, v{Ub+3}",
             f"v_cvt_pk_bf16_f32 v{Ua}, v{Ua}, v{Ub}",
             f"v_cvt_pk_bf16_f32 v{Ua+1}, v{Ua+2}, v{Ub+2}",
             f"buffer_store_dwordx2 v[{Ua}:{Ua+1}], v{vPW}, {WSR}, s{PWS[pp]} offen"]
    U8 = A3[8]
    t8 = [f"v_add_f32 v{U8}, v{U8}, v{U8+1}",
          f"v_add_f32 v{U8+1}, v{U8+2}, v{U8+3}",
          f"s_add_u32 s{S_STEP}, s{S_STEP}, 1",
          f"v_mov_b32_dpp v{U8+2}, v{U8} quad_perm:[1,0,3,2] row_mask:0xf bank_mask:0xf",
          f"v_mov_b32_dpp v{U8+3}, v{U8+1} quad_perm:[1,0,3,2] row_mask:0xf bank_mask:0xf",
          f"v_cvt_pk_bf16_f32 v{U8}, v{U8}, v{U8+2}",
          f"v_cvt_pk_bf16_f32 v{U8+1}, v{U8+1}, v{U8+3}",
          f"buffer_store_dwordx2 v[{U8}:{U8+1}], v28, {WSR}, s{S_PW4} offen"]
    pend = []
    first = True
    seq = [8, 0, 1, 2, 3, 4, 5, 6, 7]
    for n, U in enumerate(seq):
        a(f"v_smfmac_f32_16x16x64_bf16 v[{A3[U]}:{A3[U]+3}], v[{AO}:{AO+3}], {loc[(3,U,0)][1]}, v{vIDX}{' abid:1' if ABID else ''}")
        if first: a("s_waitcnt lgkmcnt(0)"); first = False
        for _ in range(2):
            if pend: a(pend.pop(0))
        a(f"v_smfmac_f32_16x16x64_bf16 v[{A3[U]}:{A3[U]+3}], v[{AO+4}:{AO+7}], {loc[(3,U,1)][1]}, v{vIDX}{' abid:1' if ABID else ''}")
        for _ in range(2):
            if pend: a(pend.pop(0))
        if n == 2: pend += t8
        if U % 2 == 1 and 3 <= U < 8: pend += pair_out((U - 3) // 2)
    book = f"""s_add_u32 s{S_KMO}, s{S_KMO}, 4096
    s_add_u32 s{S_VMO}, s{S_VMO}, 2048
    s_add_u32 s{S_KXO}, s{S_KXO}, 8192
    s_add_u32 s{S_KXO2}, s{S_KXO2}, 8192
    s_add_u32 s{S_VXO}, s{S_VXO}, 8192""".split("\n")
    for x in pend: a(x)
    for x in book: a(x)
    for x in pair_out(3): a(x)
    stamp(6)
    RL = 44
    P0, P1, P2, P3 = 38, 39, 46, 47
    a(f"""
    s_mov_b32 s{S_T2}, {PART_SLOT}
    s_sub_u32 s{S_T3}, 0, s{S_T2}
    s_bitcmp1_b32 s{S_STEP}, 0
    s_cselect_b32 s{S_T0}, s{S_T2}, s{S_T3}
    s_add_u32 s{S_PWO}, s{S_PWO}, s{S_T0}
    s_add_u32 s{S_PW1}, s{S_PW1}, s{S_T0}
    s_add_u32 s{S_PW2}, s{S_PW2}, s{S_T0}
    s_add_u32 s{S_PW3}, s{S_PW3}, s{S_T0}
    s_add_u32 s{S_PW4}, s{S_PW4}, s{S_T0}
    v_and_b32 v{P0}, 0x3f0, v{vWl}
    v_and_b32 v{P1}, 0xf0, v{P0}
    s_lshl_b32 s{S_T2}, s{S_W}, 8
    s_lshl_b32 s{S_T3}, s{S_W}, 11
    s_add_u32 s{S_T3}, s{S_T3}, {L_SH}
    s_add_u32 s{S_T2}, s{S_T2}, {L_SH+8192}
    v_add_u32 v{P2}, s{S_T3}, v{P0}
    v_add_u32 v{P3}, s{S_T2}, v{P1}
    s_cmp_lt_u32 s{S_W}, 2
    s_cselect_b32 s{S_TCH}, s{S_KXO}, s{S_VXO}
    s_and_b32 s{S_T2}, s{S_W}, 1
    s_lshl_b32 s{S_T2}, s{S_T2}, 12
    s_add_u32 s{S_TCH}, s{S_TCH}, s{S_T2}
    s_cmp_ge_u32 s{S_JOB}, 72
    s_cbranch_scc1 TEAM_NOJOB
    """)
    SEL = 28
    a(f"""
    v_and_b32 v{RL}, 0x70, v{vWl}
    v_bfe_u32 v{RL+1}, v{vWl}, 7, 3
    v_lshl_add_u32 v{RL}, v{RL+1}, 9, v{RL}
    v_and_b32 v{RL+1}, 16, v{vWl}
    v_mov_b32 v36, 0x3f80
    v_lshlrev_b32 v{RL+1}, v{RL+1}, v36
    v_bfe_u32 v36, v{vWl}, 5, 3
    v_cmp_eq_u32 vcc, 0, v36
    v_cmp_eq_u32 s[98:99], 1, v36
    v_cmp_eq_u32 s[100:101], 2, v36
    v_cndmask_b32 v{SEL}, 0, v{RL+1}, vcc
    v_cmp_eq_u32 vcc, 3, v36
    v_cndmask_b32 v{SEL+1}, 0, v{RL+1}, s[98:99]
    v_cndmask_b32 v{SEL+2}, 0, v{RL+1}, s[100:101]
    v_cndmask_b32 v{SEL+3}, 0, v{RL+1}, vcc
    """)
    def w1_loads(b, masked=False):
        if dbg_time: a("s_add_u32 s96, s96, 1")
        for hh in range(4):
            if masked: a(f"s_mov_b64 exec, s[{84+2*hh}:{85+2*hh}]")
            a(f"buffer_load_dwordx4 v[{b+4*hh}:{b+3+4*hh}], v{RL}, {WSR}, s{S_RDO} offen offset:{128*hh} sc1")
        if masked: a("s_mov_b64 exec, -1")
    D = 32
    SA = 12
    a(f"""
    v_bfe_u32 v{RL+1}, v{vWl}, 6, 1
    v_lshlrev_b32 v{RL+1}, 3, v{RL+1}
    v_bfe_u32 v36, v{vWl}, 8, 1
    v_lshl_add_u32 v{RL+1}, v36, 2, v{RL+1}
    v_bfe_u32 v36, v{vWl}, 4, 2
    v_lshl_add_u32 v{RL+1}, v36, 5, v{RL+1}
    v_and_b32 v36, 0x280, v{vWl}
    v_lshl_add_u32 v{RL+1}, v36, 21, v{RL+1}
    v_mov_b32 v40, -1
    v_mov_b32 v41, -1
    v_mov_b32 v42, -1
    v_mov_b32 v43, -1
    """)
    if W1_PRE: a(f"s_sleep {W1_PRE}")
    w1_loads(SA)
    a.label("TEAM_W1")
    for hh in range(4):
        a(f"s_waitcnt vmcnt({3 - hh})")
        a(f"v_mfma_f32_16x16x32_bf16 v[{D}:{D+3}], v[{SEL}:{SEL+3}], v[{SA+4*hh}:{SA+3+4*hh}], {'0' if hh == 0 else vr(D,4)}")
    for hh in range(4):
        b = SA + 4 * hh
        a(f"v_max3_u32 v{48+hh}, v{b}, v{b+1}, v{b+2}")
        a(f"v_max_u32 v{48+hh}, v{48+hh}, v{b+3}")
    for hh in range(4):
        a(f"v_cmp_eq_u32 s[{84+2*hh}:{85+2*hh}], -1, v{48+hh}")
    for r in range(4):
        a(f"v_add_f32_dpp v{D+r}, v{D+r}, v{D+r} row_ror:8 row_mask:0xf bank_mask:0xf")
    a(f"""
    s_or_b64 s[92:93], s[84:85], s[86:87]
    s_or_b64 s[94:95], s[88:89], s[90:91]
    v_cvt_pk_bf16_f32 v{D+4}, v{D}, v{D+1}
    v_cvt_pk_bf16_f32 v{D+5}, v{D+2}, v{D+3}
    s_or_b64 s[92:93], s[92:93], s[94:95]
    s_cbranch_scc0 TEAM_W1_OK
    """)
    w1_loads(SA, True)
    a("s_waitcnt vmcnt(0)")
    a("s_branch TEAM_W1")
    a.label("TEAM_W1_OK")
    stamp(7)
    a(f"""
    buffer_store_dword v{D+4}, v{RL+1}, {WSR}, s{S_MEMW} offen
    buffer_store_dword v{D+5}, v{RL+1}, {WSR}, s{S_MEMW} offen offset:16
    """)
    stamp(8)
    a("s_branch TEAM_W2PRE")
    a.label("TEAM_NOJOB")
    if NJ_PRE: a(f"s_sleep {NJ_PRE}")
    a(f"""
    s_cmp_lg_u32 s{S_W}, 3
    s_cbranch_scc1 TEAM_W2PRE
    s_add_u32 s{S_T1}, s{S_STEP}, 1
    s_and_b32 s{S_T2}, s{S_T1}, 3
    s_cmp_lg_u32 s{S_T2}, 0
    s_cbranch_scc1 TEAM_W2PRE
    s_cmp_ge_u32 s{S_T1}, 64
    s_cbranch_scc1 TEAM_W2PRE
    s_lshl_b32 s{S_T1}, s{S_T1}, 4
    v_mov_b32 v12, {FLG+F_KV}
    """)
    a.label("TEAM_KVP")
    a(f"""
    buffer_load_dword v13, v12, {WSR}, s{S_T1} offen sc1
    s_waitcnt vmcnt(0)
    v_readfirstlane_b32 s{S_T2}, v13
    s_lshr_b32 s{S_T2}, s{S_T2}, s{S_H}
    s_bitcmp1_b32 s{S_T2}, 0
    s_cbranch_scc0 TEAM_KVP
    """)
    a.label("TEAM_W2PRE")
    def w2_loads(b, masked=False):
        if dbg_time: a("s_add_u32 s97, s97, 1")
        for k, (ad, so, off) in enumerate(((P0, S_MEMR, ""), (P0, S_MEMR, " offset:1024"), (P1, S_MEMR3, ""))):
            if masked: a(f"s_mov_b64 exec, s[{84+2*k}:{85+2*k}]")
            a(f"buffer_load_dwordx4 v[{b+4*k}:{b+4*k+3}], v{ad}, {WSR}, s{so} offen{off} sc1")
        if masked: a("s_mov_b64 exec, -1")
    lg.q = []
    for r in (0, 1, 2): zero4(ACC[r])
    w_read(0); w_read(1)
    a(f"""
    s_add_u32 s{S_MEMW}, s{S_MEMW}, 9216
    v_mov_b32 v45, s{S_FKM}
    """)
    if W2_PRE: a(f"s_sleep {W2_PRE}")
    w2_loads(SA)
    a.label("TEAM_W2")
    for k in range(3):
        b = SA + 4 * k
        a(f"s_waitcnt vmcnt({2-k})")
        a(f"ds_write_b128 v{P2 if k < 2 else P3}, v[{b}:{b+3}]{' offset:1024' if k == 1 else ''}")
        a(f"v_max3_u32 v36, v{b}, v{b+1}, v{b+2}")
        a(f"v_max_u32 v36, v36, v{b+3}")
        a(f"v_cmp_eq_u32 s[{84+2*k}:{85+2*k}], -1, v36")
    a(f"""
    s_or_b64 s[92:93], s[84:85], s[86:87]
    s_or_b64 s[92:93], s[92:93], s[88:89]
    s_cbranch_scc0 TEAM_W2_OK
    s_and_b64 s[94:95], s[84:85], s[86:87]
    s_cmp_eq_u64 s[94:95], -1
    s_cbranch_scc0 TEAM_W2_RE
    s_sleep {max(W2_GAP,1)}
    """)
    a.label("TEAM_W2_RE")
    w2_loads(SA, True)
    a("s_waitcnt vmcnt(0)")
    a("s_branch TEAM_W2")
    a.label("TEAM_W2_OK")
    stamp(9)
    if dbg_time:
        a(f"""
        s_waitcnt lgkmcnt(0)
        s_lshl_b32 s{S_T1}, s{S_STEP}, 7
        s_lshl_b32 s{S_T2}, s{S_H}, 2
        s_add_u32 s{S_T1}, s{S_T1}, s{S_T2}
        s_add_u32 s{S_T1}, s{S_T1}, s{S_W}
        s_lshl_b32 s{S_T1}, s{S_T1}, 6
        s_add_u32 s{S_T1}, s{S_T1}, 0x7000000
        s_waitcnt vmcnt(0)
        """)
        for i in range(10):
            a(f"v_writelane_b32 v36, s{64+2*i}, {i}")
        a(f"v_writelane_b32 v36, s96, 12")
        a(f"v_writelane_b32 v36, s97, 13")
        a(f"v_bfe_u32 v37, v{vWl}, 2, 8")
        a(f"s_mov_b64 exec, 0xffff")
        a(f"buffer_store_dword v36, v37, {WSR}, s{S_T1} offen")
        a(f"s_mov_b64 exec, -1")
    if RT:
        a("s_waitcnt vmcnt(0)")
        rt(a, 16, S_STEP)
    a(f"""
    v_lshlrev_b32 v{P0}, 2, v{P0}
    v_mov_b32 v36, s{S_STEP}
    s_add_u32 s{S_MEMR}, s{S_MEMR}, 9216
    s_add_u32 s{S_MEMR3}, s{S_MEMR3}, 9216
    s_cmp_ge_u32 s{S_JOB}, 72
    s_waitcnt lgkmcnt(0)
    s_barrier
    buffer_load_dword v{vLane}, v{P0}, {WSR}, s{S_TCH} offen
    buffer_store_dword v36, v45, {WSR}, 0 offen sc1
    s_cbranch_scc1 TEAM_NORESET
    """)
    for hh in range(4):
        a(f"buffer_store_dwordx4 v[40:43], v{RL}, {WSR}, s{S_RDO} offen offset:{128*hh}")
    if MEMAHEAD: a(f"""
    s_lshl_b32 s{S_T1}, s{S_JOB}, 7
    s_add_u32 s{S_T1}, s{S_T1}, s{S_MEMW}
    s_add_u32 s{S_T1}, s{S_T1}, {2*9216}
    s_mov_b64 exec, 0xff
    buffer_store_dwordx4 v[40:43], v{P1}, {WSR}, s{S_T1} offen
    s_mov_b64 exec, -1
    """)
    a.label("TEAM_NORESET")
    zero4(ACC[3]); zero4(ACC[4]); zero4(ACC[5])
    a(f"s_add_u32 s{S_RDO}, s{S_RDO}, s{S_T0}")
    a("s_branch TEAM_STEP")
    a.label("TEAM_LAST")
    rt(a, 3)
    a(f"""
    s_waitcnt vmcnt(0) lgkmcnt(0)
    v_mov_b32 v28, 64
    v_mov_b32 v29, s{S_FKM}
    buffer_store_dword v28, v29, {WSR}, 0 offen sc1
    s_endpgm
    """)
```

```python
from asmlib import *
from layout import *
from team import *

S_RANK = 33
S_TILE = 40; S_RB = 41; S_HD = 42; S_KOFF = 43; S_WOFF = 44; S_CNT = 45; S_XS = 46
S_KB = 46; S_WB_ = 47; S_CK = 52; S_WL = 53
S_X = 48

def gen_qkv(a):
    WSR = f"s[{S_WS}:{S_WS+3}]"; XR = f"s[{S_X}:{S_X+3}]"
    SR = [f"s[{s}:{s+3}]" for s in (S_A, S_B, S_C)]
    vL, vXo, vDo, vT00, vT01, vT10, vT11, vtid = 1, 2, 3, 4, 5, 6, 7, 8
    EW = 10
    vVW, vRD, vGQ, vGV = 18, 19, 20, 21
    XF = [32, 40]
    XA = 144
    WF = [96, 120]
    def acc(m, mt, nt): return 16 * ((m * 2 + mt) * 2 + nt)
    a.label("QKV")
    a(f"""
    v_mov_b32 v{vtid}, v0
    v_and_b32 v{vL}, 63, v0
    s_load_dwordx2 s[{S_X}:{S_X+1}], s[0:1], 0
    s_lshr_b32 s{S_T0}, s{S_W}, 1          ; rh
    s_and_b32 s{S_T1}, s{S_W}, 1           ; ch
    v_lshrrev_b32 v24, 4, v{vL}
    v_and_b32 v25, 15, v{vL}
    v_lshlrev_b32 v26, 2, v24
    v_xor_b32 v25, v25, v26
    s_lshl_b32 s{S_T2}, s{S_W}, 2
    v_add_u32 v24, s{S_T2}, v24
    v_lshlrev_b32 v24, 13, v24
    v_lshl_add_u32 v{vDo}, v25, 4, v24
    v_bfe_u32 v24, v{vL}, 2, 2             ; r
    v_lshrrev_b32 v25, 5, v{vL}            ; q>>1
    v_lshl_add_u32 v25, v25, 3, v24        ; row
    v_bfe_u32 v26, v{vL}, 4, 1
    v_bfe_u32 v27, v{vL}, 1, 1
    v_lshl_add_u32 v26, v26, 1, v27
    s_lshl_b32 s{S_T2}, s{S_T1}, 3
    v_add_u32 v26, s{S_T2}, v26            ; cc
    v_lshlrev_b32 v24, 2, v24
    v_xor_b32 v26, v26, v24
    v_lshlrev_b32 v26, 4, v26
    v_lshl_add_u32 v26, v25, 8, v26
    v_and_b32 v27, 1, v{vL}
    v_lshl_add_u32 v{vT00}, v27, 3, v26
    v_xor_b32 v{vT01}, 64, v{vT00}
    v_add_u32 v{vT10}, 65536, v{vT00}
    v_add_u32 v{vT11}, 65536, v{vT01}
    v_lshrrev_b32 v24, 3, v{vL}
    v_and_b32 v25, 7, v{vL}
    v_xor_b32 v25, v25, v24
    s_lshl_b32 s{S_T2}, s{S_W}, 3
    v_add_u32 v24, s{S_T2}, v24
    v_mul_u32_u24 v24, 1152, v24
    v_lshl_add_u32 v{vXo}, v25, 4, v24
    v_and_b32 v24, 31, v{vL}
    v_lshrrev_b32 v25, 5, v{vL}
    v_and_b32 v26, 7, v{vL}
    v_xor_b32 v25, v25, v26
    v_lshlrev_b32 v25, 4, v25
    v_lshl_add_u32 v25, v24, 7, v25
    s_lshl_b32 s{S_T2}, s{S_T0}, 13
    s_add_u32 s{S_T2}, s{S_T2}, 49152
    v_add_u32 v{XA}, s{S_T2}, v25
    v_xor_b32 v{XA+1}, 32, v{XA}
    v_xor_b32 v{XA+2}, 64, v{XA}
    v_xor_b32 v{XA+3}, 96, v{XA}
    v_add_u32 v{XA+4}, 65536, v{XA}
    v_add_u32 v{XA+5}, 65536, v{XA+1}
    v_add_u32 v{XA+6}, 65536, v{XA+2}
    v_add_u32 v{XA+7}, 65536, v{XA+3}
    s_lshl_b32 s{S_WL}, s{S_W}, 10
    v_and_b32 v24, 31, v{vL}
    v_and_b32 v25, 15, v{vL}
    s_lshl_b32 s{S_T2}, s{S_T1}, 3
    v_xor_b32 v25, s{S_T2}, v25
    v_lshlrev_b32 v25, 4, v25
    v_lshl_add_u32 v25, v24, 8, v25
    v_lshrrev_b32 v26, 5, v{vL}
    v_lshl_add_u32 v25, v26, 3, v25
    s_mul_i32 s{S_T2}, s{S_T0}, 49152
    v_add_u32 v{EW}, s{S_T2}, v25
    """)
    for k in range(1, 8): a(f"v_xor_b32 v{EW+k}, {16*k}, v{EW}")
    a(f"""
    s_lshl_b32 s{S_T3}, s{S_T1}, 12
    s_add_u32 s{S_T2}, s{S_T2}, s{S_T3}
    s_add_u32 s{S_T2}, s{S_T2}, 16384
    v_lshlrev_b32 v24, 6, v24
    v_lshl_add_u32 v24, v26, 4, v24
    v_add_u32 v{vVW}, s{S_T2}, v24
    v_lshlrev_b32 v{vRD}, 4, v{vtid}
    v_lshrrev_b32 v24, 4, v{vtid}
    v_and_b32 v25, 15, v{vtid}
    v_xor_b32 v25, v25, v24
    v_lshlrev_b32 v25, 4, v25
    v_lshl_add_u32 v{vGQ}, v24, 8, v25
    s_waitcnt lgkmcnt(0)
    s_and_b32 s{S_X+1}, s{S_X+1}, 0xffff
    s_mov_b32 s{S_X+2}, 2359296
    s_mov_b32 s{S_X+3}, 0x00020000
    s_mov_b32 s{S_TILE}, 0
    """)
    a.label("QKV_TILE")
    a(f"""
    ; rounds: 0: KV(rb=rank%7) ; 1: QKV(rb=7+rank%7) ; 2: Q(rb=rank%7) ; 3: rank<64: QKV(h=rank>>1, rb=14+(rank&1))
    s_cmp_ge_u32 s{S_TILE}, 4
    s_cbranch_scc1 QKV_DONE
    s_mul_i32 s{S_HD}, s{S_RANK}, 9363
    s_lshr_b32 s{S_HD}, s{S_HD}, 16
    s_mul_i32 s{S_T0}, s{S_HD}, 7
    s_sub_u32 s{S_RB}, s{S_RANK}, s{S_T0}
    s_cmp_eq_u32 s{S_TILE}, 1
    s_cselect_b32 s{S_T0}, 7, 0
    s_add_u32 s{S_RB}, s{S_RB}, s{S_T0}
    s_cmp_lg_u32 s{S_TILE}, 3
    s_cbranch_scc1 QKV_GO
    s_cmp_ge_u32 s{S_RANK}, 64
    s_cbranch_scc1 QKV_DONE
    s_lshr_b32 s{S_HD}, s{S_RANK}, 1
    s_and_b32 s{S_RB}, s{S_RANK}, 1
    s_add_u32 s{S_RB}, s{S_RB}, 14
    """)
    a.label("QKV_GO")
    a(f"""
    s_mul_i32 s{S_KB}, s{S_RB}, {128*1152}
    s_lshl_b32 s{S_WB_}, s{S_HD}, 8
    s_mul_i32 s{S_CK}, s{S_RB}, 4
    s_mul_i32 s{S_T0}, s{S_CK}, 7282
    s_lshr_b32 s{S_T0}, s{S_T0}, 16
    s_mul_i32 s{S_T0}, s{S_T0}, 9
    s_sub_u32 s{S_CK}, s{S_CK}, s{S_T0}
    s_cmp_eq_u32 s{S_TILE}, 0
    s_cbranch_scc1 QKV_BODY_KV
    s_cmp_eq_u32 s{S_TILE}, 2
    s_cbranch_scc1 QKV_BODY_Q
    """)
    def body(tag, mats):
        def issue_list(buf):
            L_ = []
            L_.append(f"""
            s_lshl_b32 s{S_KOFF}, s{S_CK}, 7
            s_add_u32 s{S_KOFF}, s{S_KOFF}, s{S_KB}
            s_lshl_b32 s{S_WOFF}, s{S_CK}, 19
            s_add_u32 s{S_WOFF}, s{S_WOFF}, s{S_WB_}
            s_add_u32 s{S_CK}, s{S_CK}, 1
            s_cmp_eq_u32 s{S_CK}, 9
            s_cselect_b32 s{S_CK}, 0, s{S_CK}
            """)
            for u in range(4):
                L_.append(f"""
                s_add_u32 m0, s{S_WL}, {buf*65536 + 49152 + u*4096}
                s_add_u32 s{S_T1}, s{S_KOFF}, {u*32*1152}
                buffer_load_dwordx4 v{vXo}, {XR}, s{S_T1} offen lds
                """)
            for m in mats:
                for u in range(4):
                    L_.append(f"""
                    s_add_u32 m0, s{S_WL}, {buf*65536 + m*16384 + u*4096}
                    s_add_u32 s{S_T1}, s{S_WOFF}, {u*131072}
                    buffer_load_dwordx4 v{vDo}, {SR[m]}, s{S_T1} offen lds
                    """)
            return L_
        def wreads(buf, ks):
            for mt in range(2):
                b = XF[ks % 2] + 4 * mt
                a(f"ds_read_b128 v[{b}:{b+3}], v{XA + 4*buf + ks} offset:{4096*mt}")
            for m in mats:
                for nt in range(2):
                    b = WF[ks % 2] + 8 * m + 4 * nt
                    ad = [[vT00, vT01], [vT10, vT11]][buf][nt]
                    for hh in range(2):
                        a(f"ds_read_b64_tr_b16 v[{b+2*hh}:{b+2*hh+1}], v{ad} offset:{m*16384 + ks*4096 + hh*1024}")
        def compute(buf, first, dma):
            dma = list(dma)
            wreads(buf, 0)
            if dma: a(dma.pop(0))
            for ks in range(4):
                if ks < 3:
                    wreads(buf, ks + 1)
                    a(f"s_waitcnt lgkmcnt({2 + 4*len(mats)})")
                else:
                    a("s_waitcnt lgkmcnt(0)")
                for m in mats:
                    for nt in range(2):
                        for mt in range(2):
                            w = vr(WF[ks % 2] + 8 * m + 4 * nt, 4); x = vr(XF[ks % 2] + 4 * mt, 4)
                            d = ar(acc(m, mt, nt), 16)
                            c = "0" if (first and ks == 0) else d
                            if m < 2: a(f"v_mfma_f32_32x32x16_bf16 {d}, {w}, {x}, {c}")
                            else: a(f"v_mfma_f32_32x32x16_bf16 {d}, {x}, {w}, {c}")
                            if dma: a(dma.pop(0))
            assert not dma
        a.label("QKV_BODY_" + tag)
        for x in issue_list(0): a(x)
        a("s_waitcnt vmcnt(0)\ns_barrier")
        compute(0, True, issue_list(1))
        a(f"s_mov_b32 s{S_CNT}, 0")
        a.label("QKV_LOOP_" + tag)
        a("s_waitcnt vmcnt(0)\ns_barrier")
        compute(1, False, issue_list(0))
        a("s_waitcnt vmcnt(0)\ns_barrier")
        a(f"s_cmp_eq_u32 s{S_CNT}, 3")
        a(f"s_cbranch_scc1 QKV_LASTC_{tag}")
        compute(0, False, issue_list(1))
        a(f"""
        s_add_u32 s{S_CNT}, s{S_CNT}, 1
        s_branch QKV_LOOP_{tag}
        """)
        a.label("QKV_LASTC_" + tag)
        compute(0, False, [])
        a("s_nop 15\ns_barrier")
        T = 32
        for m in mats:
            if m == 2: continue
            for mt in range(2):
                for nt in range(2):
                    base = acc(m, mt, nt)
                    for r in range(16): a(f"v_accvgpr_read_b32 v{T+r}, a{base+r}")
                    for qd in range(4):
                        a(f"v_cvt_pk_bf16_f32 v{T+16+2*qd}, v{T+4*qd}, v{T+4*qd+1}")
                        a(f"v_cvt_pk_bf16_f32 v{T+17+2*qd}, v{T+4*qd+2}, v{T+4*qd+3}")
                    for qd in range(4):
                        a(f"ds_write_b64 v{EW+4*nt+qd}, v[{T+16+2*qd}:{T+17+2*qd}] offset:{mt*24576 + m*8192}")
                    T = 96 - T
        if 2 in mats:
            for mt in range(2):
                for nt in range(2):
                    base = acc(2, mt, nt)
                    for r in range(16): a(f"v_accvgpr_read_b32 v{T+r}, a{base+r}")
                    for qp in range(2):
                        a(f"v_cvt_pk_bf16_f32 v{T+16+4*qp}, v{T+4*qp}, v{T+4*qp+1}")
                        a(f"v_cvt_pk_bf16_f32 v{T+17+4*qp}, v{T+4*qp+2}, v{T+4*qp+3}")
                        a(f"v_cvt_pk_bf16_f32 v{T+18+4*qp}, v{T+8+4*qp}, v{T+8+4*qp+1}")
                        a(f"v_cvt_pk_bf16_f32 v{T+19+4*qp}, v{T+8+4*qp+2}, v{T+8+4*qp+3}")
                    for qp in range(2):
                        a(f"ds_write_b128 v{vVW}, v[{T+16+4*qp}:{T+19+4*qp}] offset:{mt*24576 + nt*2048 + qp*32}")
                    T = 96 - T
        a("s_waitcnt lgkmcnt(0)\ns_barrier")
        a(f"""
        s_lshl_b32 s{S_T0}, s{S_RB}, 2
        s_lshl_b32 s{S_T1}, s{S_HD}, 6
        s_add_u32 s{S_T0}, s{S_T0}, s{S_T1}
        s_lshl_b32 s{S_T0}, s{S_T0}, 13
        v_add_u32 v24, 65536, v{vRD}
        """)
        R = 32
        regions = [QX, KX, VX]
        items = [(m, sg, u) for m in (1, 2, 0) if m in mats for sg in range(4) for u in range(2)]
        for n, (m, sg, u) in enumerate(items):
            off = sg * 24576 + m * 8192 + u * 4096
            b = R + 4 * n
            if off < 65536: a(f"ds_read_b128 v[{b}:{b+3}], v{vRD} offset:{off}")
            else: a(f"ds_read_b128 v[{b}:{b+3}], v24 offset:{off-65536}")
        for n, (m, sg, u) in enumerate(items):
            b = R + 4 * n
            if n % 4 == 0: a(f"s_waitcnt lgkmcnt({min(15, len(items)-n-4)})")
            a(f"s_add_u32 s{S_T1}, s{S_T0}, {regions[m] + sg*8192 + u*4096}")
            a(f"buffer_store_dwordx4 v[{b}:{b+3}], v{vGQ if m < 2 else vRD}, {WSR}, s{S_T1} offen sc1")
        a(f"""
        s_waitcnt vmcnt(0)
        s_barrier
        s_cmp_lg_u32 s{S_W}, 0
        s_cbranch_scc1 QKV_NEXT
        s_lshl_b32 s{S_T0}, 1, s{S_HD}
        s_lshl_b32 s{S_T1}, s{S_RB}, 6
        s_add_u32 s{S_T1}, s{S_T1}, {FLG+F_KV}
        v_mov_b32 v24, s{S_T0}
        v_mov_b32 v25, s{S_T1}
        s_mov_b64 exec, 1
        """)
        if 1 in mats: a(f"buffer_atomic_or v24, v25, {WSR}, 0 offen")
        if 0 in mats: a(f"buffer_atomic_or v24, v25, {WSR}, 0 offen offset:4")
        a("s_mov_b64 exec, -1\ns_branch QKV_NEXT")
    body("ALL", (0, 1, 2))
    body("KV", (1, 2))
    body("Q", (0,))
    a.label("QKV_NEXT")
    rt(a, 108, S_TILE)
    a(f"""
    s_add_u32 s{S_TILE}, s{S_TILE}, 1
    s_branch QKV_TILE
    """)
    a.label("QKV_DONE")
```

```python
from asmlib import *
from layout import *

class Q:
    def __init__(self, a, name, maxc):
        self.a = a; self.name = name; self.maxc = maxc; self.q = []
    def issue(self, tag):
        self.q.append(tag)
    def wait(self, tag):
        if tag not in self.q: return
        idx = max(i for i, t in enumerate(self.q) if t == tag)
        n = len(self.q) - 1 - idx
        assert n <= self.maxc, (self.name, tag, n)
        self.a(f"s_waitcnt {self.name}({n})")
        self.q = self.q[idx + 1:]
    def wait_all(self):
        self.a(f"s_waitcnt {self.name}(0)")
        self.q = []
    def has(self, tag):
        return tag in self.q

S_WS = 4; S_DBG = 8; S_A = 12; S_B = 16; S_C = 20; S_D = 24; S_OUT = 28
S_W = 32
S_H = 33
S_STEP = 34
S_T0 = 35; S_T1 = 36; S_T2 = 37; S_T3 = 38
S_MHG = 40
S_CEXP = 50
S_KXO = 52; S_VXO = 53; S_KMO = 54; S_VMO = 55; S_PWO = 56; S_RDO = 57; S_MEMW = 58; S_MEMR = 59
S_JOB = 60; S_FKM = 61; S_KXO2 = 62; S_MEMR3 = 63
S_PW1 = 42; S_PW2 = 43; S_PW3 = 44; S_PW4 = 45
OOB = 0x7ff00000
import sys
RT = '--rt' in sys.argv
DBGT = 0x7800000
def rt(a, idx, sidx=None):
    if not RT: return
    a(f"""
    s_memrealtime s[92:93]
    s_lshl_b32 s94, s2, 10
    s_add_u32 s94, s94, {DBGT + 4*idx}
    s_waitcnt lgkmcnt(0)
    """)
    if sidx is not None:
        a(f"s_lshl_b32 s95, s{sidx}, 2")
        a(f"s_add_u32 s94, s94, s95")
    a(f"""
    v_mov_b32 v22, s92
    v_mov_b32 v23, 0
    buffer_store_dword v22, v23, s[{S_WS}:{S_WS+3}], s94 offen
    """)

import os
W1_GAP = int(os.environ.get('W1_GAP', 0)); W2_GAP = int(os.environ.get('W2_GAP', 0))
W1_PRE = int(os.environ.get('W1_PRE', 0)); W2_PRE = int(os.environ.get('W2_PRE', 0)); NJ_PRE = int(os.environ.get('NJ_PRE', 0))
MEMAHEAD = int(os.environ.get('MEMAHEAD', 0))
ABID = 1
HK_BEFORE = int(os.environ.get('HK_BEFORE', 0)); W1FAST = int(os.environ.get('W1FAST', 1))
RING = int(os.environ.get('RING', 1)); JIT = int(os.environ.get('JIT', 0))
S_TCH = 47; S_EOF = 46; S_FIRST = 48; S_RDP = 49; S_MWB = 51
LATE_I1 = int(os.environ.get('LATE_I1', 10)); LATE_C1 = int(os.environ.get('LATE_C1', 26))

def frag_regs():
    loc = {}
    regs = [ar(8 * i, 8) for i in range(32)] + [vr(80 + 8 * i, 8) for i in range(22)]
    ri = 0; m = 0
    order = [(T, kk) for kk in range(6) for T in range(6)]
    order += [(T, kk) for kk in (6, 7, 8) for T in (0, 2, 1, 3)]
    order += [(T, kk) for kk in (6, 7, 8) for T in (4, 5)]
    for n, (T, kk) in enumerate(order):
        if n % 3 == 2:
            loc[(1, T, kk)] = ("lds", m); m += 1
        else:
            loc[(1, T, kk)] = ("reg", regs[ri]); ri += 1
    for U in range(9):
        for ks in range(2):
            loc[(3, U, ks)] = ("reg", regs[ri]); ri += 1
    assert m == 18 and ri == 54
    return loc, order

def line_of(sig):
    if sig < 48: return 18 * (sig // 12) + sig % 12
    sp = sig - 48
    return 18 * (sp // 6) + 12 + sp % 6

def sub(reg8):
    k = reg8[0]; lo = int(reg8[2:reg8.index(":")])
    return k, lo

def rng(k, lo, n):
    return f"{k}[{lo}:{lo+n-1}]" if n > 1 else f"{k}{lo}"

def gen_team(a, dbg_time=False):
    loc, order = frag_regs()
    vIDX, vWl, vSh, vZw, vZr, vSw, vSrX, vSr0, vOr, vLane, vPW, vKX = range(12)
    vZero = vIDX
    AB = [12, 16, 20]
    ACC = [24, 28, 32, 36, 40, 44]
    WB = [48, 56]
    KXR = 64; VXR = 72
    WSR = f"s[{S_WS}:{S_WS+3}]"
    lg = Q(a, "lgkmcnt", 15); vm = Q(a, "vmcnt", 63)
    def stamp(i):
        if dbg_time: a(f"{'s_memrealtime' if '--real' in sys.argv else 's_memtime'} s[{64+2*i}:{65+2*i}]") if i < 10 else None

    a.label("TEAM")
    rt(a, 0)
    stamp(10)
    a(f"v_and_b32 v{vLane}, 63, v0")
    a(f"v_mov_b32 v79, v0")
    L = f"v{vLane}"
    a(f"""
    v_and_b32 v12, 15, {L}            ; i
    v_lshrrev_b32 v13, 4, {L}         ; g
    v_and_b32 v14, 7, {L}             ; i&7
    v_bfe_u32 v15, {L}, 3, 1          ; i>>3
    v_lshrrev_b32 v16, 5, {L}         ; lane>>5 = g>>1
    v_and_b32 v17, 1, v13             ; g&1
    v_and_b32 v22, 1, {L}             ; hf = i&1
    v_lshrrev_b32 v23, 1, v12         ; t = i>>1
    s_mul_i32 s{S_T0}, s{S_W}, {L_REG}
    s_add_u32 s{S_T0}, s{S_T0}, {L_SC}        ; scratch region of this wave
    v_mov_b32 v18, {0x44440000 if ABID else 0x00104444}
    v_mov_b32 v19, {0xeeee0000 if ABID else 0x0010eeee}
    v_cmp_lt_u32 vcc, 0, v22
    v_cndmask_b32 v{vIDX}, v18, v19, vcc
    s_mul_i32 s{S_T1}, s{S_W}, 36864
    v_lshlrev_b32 v18, 4, {L}
    v_add_u32 v{vWl}, s{S_T1}, v18
    v_lshlrev_b32 v20, 8, v13
    v_lshl_add_u32 v20, v22, 7, v20
    v_lshl_add_u32 v20, v23, 4, v20
    v_add_u32 v{vSh}, {L_SH}, v20
    ; vZw = region + n*32 + g*4
    v_lshlrev_b32 v20, 5, v12
    v_lshl_add_u32 v20, v13, 2, v20
    v_add_u32 v{vZw}, s{S_T0}, v20
    v_bfe_u32 v20, {L}, 2, 2          ; r
    v_lshl_add_u32 v20, v13, 3, v20   ; 8g+r
    v_lshlrev_b32 v20, 5, v20
    v_and_b32 v21, 3, {L}
    v_lshl_add_u32 v20, v21, 3, v20
    v_add_u32 v{vZr}, s{S_T0}, v20
    v_lshl_add_u32 v20, v13, 3, v14   ; g*8+(i&7)
    v_lshlrev_b32 v20, 4, v20
    v_add_u32 v21, s{S_T0}, v20
    v_mov_b32 v19, 0x40000
    v_cmp_lt_u32 vcc, 0, v15          ; i>=8
    v_cndmask_b32 v{vSw}, v19, v21, vcc
    v_mov_b32 v19, 1280
    v_mov_b32 v21, 768
    v_cndmask_b32 v19, v19, v21, vcc
    v_add3_u32 v{vSrX}, v20, v19, 0
    v_add_u32 v{vSrX}, {L_SC}, v{vSrX}
    v_lshl_add_u32 v20, v16, 3, v14
    v_lshlrev_b32 v20, 4, v20
    v_lshl_add_u32 v20, v17, 3, v20
    v_add_u32 v{vSr0}, {L_SC}, v20
    v_lshl_add_u32 v20, v17, 1, v22
    v_lshl_add_u32 v20, v20, 3, v23
    v_lshlrev_b32 v20, 4, v20
    v_mul_u32_u24 v21, {L_REG}, v16
    v_add3_u32 v{vOr}, v20, v21, 0
    v_add_u32 v{vOr}, {L_SC+256}, v{vOr}
    ; vPW = (18w + (n>>2))*4096 + ((n>>1)&1)*64 + g*16 + (n&1)*8
    s_mul_i32 s{S_T1}, s{S_W}, 18
    v_lshrrev_b32 v20, 2, v12
    v_add_u32 v20, s{S_T1}, v20
    v_lshlrev_b32 v20, 12, v20
    v_bfe_u32 v21, v12, 1, 1
    v_lshl_add_u32 v20, v21, 6, v20
    v_lshl_add_u32 v20, v13, 4, v20
    v_lshl_add_u32 v{vPW}, v22, 3, v20
    ; vKX = i*256 + w*64 + g*16
    v_lshlrev_b32 v20, 8, v12
    v_lshl_add_u32 v20, v13, 4, v20
    s_lshl_b32 s{S_T1}, s{S_W}, 6
    v_add_u32 v{vKX}, s{S_T1}, v20
    s_mov_b32 s{S_MHG}, 0x00f000f0
    s_mov_b32 s{S_MHG+1}, 0x00f000f0
    s_mov_b32 s{S_CEXP}, 0x3e0293ee
    """)
    a(f"""
    v_lshrrev_b32 v24, 4, v79         ; rho0
    v_and_b32 v25, 15, v79            ; cc
    v_and_b32 v26, 7, v24
    v_bfe_u32 v27, v24, 3, 1
    v_lshlrev_b32 v27, 1, v27
    v_xor_b32 v26, v26, v27           ; key1
    v_lshlrev_b32 v26, 1, v26
    v_xor_b32 v26, v25, v26           ; pos
    v_lshlrev_b32 v26, 4, v26
    v_lshl_add_u32 v26, v24, 8, v26
    v_add_u32 v28, {L_SH}, v26
    v_and_b32 v27, 1, v24
    v_bfe_u32 v26, v24, 2, 1
    v_lshl_add_u32 v27, v26, 1, v27
    v_lshlrev_b32 v27, 1, v27
    v_xor_b32 v26, v25, v27
    v_lshlrev_b32 v26, 4, v26
    v_lshl_add_u32 v26, v24, 8, v26
    v_add_u32 v29, {L_SH}, v26
    v_xor_b32 v30, 128, v29           ; u odd
    v_and_b32 v26, 12, v25
    v_bfe_u32 v31, v25, 1, 1
    v_or_b32 v26, v26, v31
    v_xor_b32 v26, v26, v27
    v_lshlrev_b32 v26, 4, v26
    v_and_b32 v31, 1, v25
    v_lshl_add_u32 v26, v31, 3, v26
    v_lshl_add_u32 v26, v24, 8, v26
    v_add_u32 v18, {L_SH}, v26
    v_xor_b32 v19, 32, v18
    v_xor_b32 v20, 128, v18
    v_xor_b32 v21, 160, v18
    v_lshlrev_b32 v31, 13, v24
    v_lshl_add_u32 v31, v25, 4, v31
    v_mul_u32_u24 v26, 1152, v24
    v_lshrrev_b32 v27, 2, v25
    v_mul_u32_u24 v27, 288, v27
    v_and_b32 v25, 3, v25
    v_lshl_add_u32 v27, v25, 4, v27
    v_add_u32 v79, v26, v27
    """)
    a(f"""
    v_bfe_u32 v32, {L}, 2, 2          ; r
    v_and_b32 v33, 3, {L}             ; c
    v_lshrrev_b32 v34, 1, v32         ; r>>1
    v_and_b32 v35, 1, v32             ; r&1
    v_lshrrev_b32 v36, 1, v13         ; gb>>1
    s_lshl_b32 s{S_T1}, s{S_W}, 2     ; 4w
    """)
    RA1 = [40, 41, 42, 43]
    RA3 = [44, 45, 46, 47]
    for mp in range(2):
        a(f"""
        v_lshl_add_u32 v37, v17, 2, v35       ; 4*(gb&1) + (r&1)
        v_add_u32 v37, {2*mp}, v37            ; 2j + (r&1)
        v_lshl_add_u32 v38, v34, 3, v37       ; rho15
        v_lshl_add_u32 v38, v36, 4, v38       ; + 16*(gb>>1)
        v_lshlrev_b32 v39, 1, v34
        v_xor_b32 v37, v37, v39               ; key
        v_lshlrev_b32 v37, 1, v37
        v_lshrrev_b32 v39, 1, v33
        v_add_u32 v39, s{S_T1}, v39           ; 4w + (c>>1)
        v_xor_b32 v37, v37, v39
        v_lshlrev_b32 v37, 4, v37
        v_lshl_add_u32 v37, v38, 8, v37
        v_and_b32 v39, 1, v33
        v_lshl_add_u32 v37, v39, 3, v37
        v_add_u32 v{RA1[2*mp]}, {L_SH}, v37
        v_xor_b32 v{RA1[2*mp+1]}, 32, v{RA1[2*mp]}
        """)
        a(f"""
        v_lshl_add_u32 v38, v17, 4, v35
        v_lshl_add_u32 v38, v36, 3, v38
        v_lshl_add_u32 v38, v34, 2, v38
        v_add_u32 v38, {2*mp}, v38
        v_lshl_add_u32 v37, v34, 1, v35
        v_lshl_add_u32 v37, v17, 2, v37       ; key
        v_lshlrev_b32 v37, 1, v37
        v_lshrrev_b32 v39, 1, v33
        v_add_u32 v39, s{S_T1}, v39
        v_xor_b32 v37, v37, v39
        v_lshlrev_b32 v37, 4, v37
        v_lshl_add_u32 v37, v38, 8, v37
        v_and_b32 v39, 1, v33
        v_lshl_add_u32 v37, v39, 3, v37
        v_add_u32 v{RA3[2*mp]}, {L_SH}, v37
        v_xor_b32 v{RA3[2*mp+1]}, 32, v{RA3[2*mp]}
        """)
    a(f"""
    v_mov_b32 v39, v79
    v_mov_b32 v32, v18
    v_mov_b32 v33, v19
    v_mov_b32 v34, v20
    v_mov_b32 v35, v21
    s_mov_b32 s{S_T2}, 0x05040100
    s_mov_b32 s{S_T3}, 0x07060302
    """)
    stages = []
    for mat in range(3):
        for kk in range(9):
            stages.append((1, mat, kk))
    for up in range(5):
        for ks in range(2):
            stages.append((3, ks, up))
    NS = len(stages)
    pool = [(48, 10**9), (64, 10**9)] + [(112 + 16 * k, 27 + 2 * (k >> 1)) for k in range(9)]
    DEPTH = 9
    land = {}; issue_at = {}
    busy_until = {b: -1 for b, _ in pool}
    for n in range(NS):
        best = None
        for b, lim in pool:
            if n > lim: continue
            m = max(busy_until[b], n - DEPTH)
            if best is None or m < best[0] or (m == best[0] and lim < best[2]): best = (m, b, lim)
        m, b, lim = best
        if n > 0: m = max(m, issue_at[n - 1])
        land[n] = b; issue_at[n] = m; busy_until[b] = n
    TMPF = 12
    SRDS = [S_A, S_B, S_C]
    def issue_loads(n):
        kind, x, y = stages[n]
        b = land[n]
        if kind == 1:
            a(f"s_lshl_b32 s{S_T0}, s{S_H}, 8")
            for u in range(4):
                a(f"s_add_u32 s{S_T1}, s{S_T0}, {8*line_of(8*y+2*u)*8192}")
                a(f"buffer_load_dwordx4 v[{b+4*u}:{b+4*u+3}], v31, s[{SRDS[x]}:{SRDS[x]+3}], s{S_T1} offen")
                vm.issue(("ld", n))
        else:
            a(f"s_mul_i32 s{S_T1}, s{S_H}, 147456")
            a(f"s_add_u32 s{S_T1}, s{S_T1}, {x*64*1152 + y*64}")
            for u in range(4):
                a(f"buffer_load_dwordx4 v[{b+4*u}:{b+4*u+3}], v39, s[{S_D}:{S_D+3}], s{S_T1} offen")
                vm.issue(("ld", n))
                if u < 3: a(f"s_add_u32 s{S_T1}, s{S_T1}, {16*1152}")
    vm.q = []
    for n in range(NS):
        if issue_at[n] < 0: issue_loads(n)
    for n, (kind, x, y) in enumerate(stages):
        b = land[n]
        vm.wait(("ld", n))
        for u in range(4):
            d = b + 4 * u
            if kind == 3 and y < 4:
                a(f"""
                v_perm_b32 v12, v{d+1}, v{d}, s{S_T2}
                v_perm_b32 v13, v{d+3}, v{d+2}, s{S_T2}
                v_perm_b32 v14, v{d+1}, v{d}, s{S_T3}
                v_perm_b32 v15, v{d+3}, v{d+2}, s{S_T3}
                ds_write_b64 v{32 + 2*(u%2)}, v[12:13] offset:{4096*u}
                ds_write_b64 v{33 + 2*(u%2)}, v[14:15] offset:{4096*u}
                """)
            else:
                wa = 28 if kind == 1 else (29 if u % 2 == 0 else 30)
                a(f"ds_write_b128 v{wa}, v[{d}:{d+3}] offset:{4096*u}")
        a("s_waitcnt lgkmcnt(0)")
        a("s_barrier")
        for n2 in range(NS):
            if issue_at[n2] == n: issue_loads(n2)
        RA = RA1 if kind == 1 else RA3
        ntiles = 2 if not (kind == 3 and y == 4) else 1
        wb = []
        for nt in range(ntiles):
            key = (1, 2 * x + nt, y) if kind == 1 else (3, 2 * y + nt, x)
            where, what = loc[key]
            if where == "reg":
                k, lo = sub(what)
            else:
                k, lo = "v", TMPF + 8 * nt
                wb.append((what, lo))
            for hb in range(2):
                for mp in range(2):
                    a(f"ds_read_b64_tr_b16 {rng(k, lo + 4*hb + 2*mp, 2)}, v{RA[2*mp+nt]} offset:{8192*hb}")
        a("s_waitcnt lgkmcnt(0)")
        for (m, lo) in wb:
            a(f"ds_write_b128 v{vWl}, v[{lo}:{lo+3}] offset:{2048*m}")
            a(f"ds_write_b128 v{vWl}, v[{lo+4}:{lo+7}] offset:{2048*m+1024}")
        a("s_barrier")
    stamp(11)
    rt(a, 1)
    a(f"""
    v_mov_b32 v24, -1
    v_mov_b32 v25, -1
    v_mov_b32 v26, -1
    v_mov_b32 v27, -1
    v_lshl_add_u32 v29, s{S_W}, 6, v{vLane}
    v_lshlrev_b32 v28, 4, v29
    s_mul_i32 s{S_T1}, s{S_H}, 18432
    s_add_u32 s{S_T1}, s{S_T1}, {PART}
    """)
    for u in range(4):
        a(f"buffer_store_dwordx4 v[24:27], v28, {WSR}, s{S_T1} offen")
        a(f"s_add_u32 s{S_T1}, s{S_T1}, 4096")
    a(f"""
    v_cmp_gt_u32 vcc, 128, v29
    s_mov_b64 exec, vcc
    buffer_store_dwordx4 v[24:27], v28, {WSR}, s{S_T1} offen
    v_cmp_gt_u32 vcc, 54, v29
    s_mov_b64 exec, vcc
    s_mul_i32 s{S_T1}, s{S_H}, 864
    s_add_u32 s{S_T1}, s{S_T1}, {MEM+9216}
    buffer_store_dwordx4 v[24:27], v28, {WSR}, s{S_T1} offen
    s_mov_b64 exec, -1
    """)
    if dbg_time:
        a(f"""
        s_lshl_b32 s{S_T1}, s{S_H}, 14
        s_add_u32 s{S_T1}, s{S_T1}, 0x7000000
        """)
        for u in range(4):
            a(f"buffer_store_dwordx4 v[24:27], v28, {WSR}, s{S_T1} offen")
            a(f"s_add_u32 s{S_T1}, s{S_T1}, 4096")
    if not MEMAHEAD:
        a(f"""
        s_mul_i32 s{S_T1}, s{S_H}, 18720
        s_add_u32 s{S_T1}, s{S_T1}, {MEM}
        """)
        for u in range(4):
            a(f"buffer_store_dwordx4 v[24:27], v28, {WSR}, s{S_T1} offen")
            a(f"s_add_u32 s{S_T1}, s{S_T1}, 4096")
        a(f"""
        v_cmp_gt_u32 vcc, 146, v29
        s_mov_b64 exec, vcc
        buffer_store_dwordx4 v[24:27], v28, {WSR}, s{S_T1} offen
        s_mov_b64 exec, -1
        """)
    a(f"""
    v_and_b32 v12, 7, {L}
    v_mul_u32_u24 v12, 1152, v12       ; t*1152
    v_lshrrev_b32 v13, 3, {L}          ; q
    s_lshl_b32 s{S_T1}, s{S_W}, 4
    v_add_u32 v15, s{S_T1}, v13
    v_add_u32 v16, 8, v15
    v_add_u32 v17, 64, v13
    s_lshl_b32 s{S_T2}, s{S_W}, 11
    v_lshlrev_b32 v14, 4, {L}
    v_add_u32 v14, {L_SH}, v14
    v_add_u32 v13, s{S_T2}, v14
    s_load_dwordx2 s[{S_A}:{S_A+1}], s[0:1], 80
    """)
    for r in (15, 16, 17):
        a(f"""
        v_mul_u32_u24 v18, 43, v{r}
        v_lshrrev_b32 v18, 9, v18          ; sigma/12
        v_mul_u32_u24 v18, 6, v18
        v_add_u32 v18, v18, v{r}           ; J early
        v_subrev_u32 v19, 48, v{r}
        v_mul_u32_u24 v20, 43, v19
        v_lshrrev_b32 v20, 8, v20          ; sp/6
        v_mul_u32_u24 v20, 12, v20
        v_add3_u32 v19, v19, v20, 12       ; J late
        v_cmp_gt_u32 vcc, 48, v{r}
        v_cndmask_b32 v18, v19, v18, vcc
        v_lshl_add_u32 v{r}, v18, 4, v12
        """)
    a(f"""
    s_waitcnt lgkmcnt(0)
    s_and_b32 s{S_A+1}, s{S_A+1}, 0xffff
    s_mov_b32 s{S_A+2}, 9216
    s_mov_b32 s{S_A+3}, 0x00020000
    buffer_load_dwordx4 v[28:31], v15, s[{S_A}:{S_A+3}], 0 offen
    buffer_load_dwordx4 v[20:23], v16, s[{S_A}:{S_A+3}], 0 offen
    buffer_load_dwordx4 v[24:27], v17, s[{S_A}:{S_A+3}], 0 offen
    s_waitcnt vmcnt(0)
    ds_write_b128 v13, v[28:31]
    ds_write_b128 v13, v[20:23] offset:1024
    ds_write_b128 v14, v[24:27] offset:8192
    """)
    vm.q = []
    a(f"""
    s_waitcnt lgkmcnt(0)
    s_barrier
    s_cmp_lg_u32 s{S_W}, 0
    s_cbranch_scc1 TEAM_BAR_DONE
    v_mov_b32 v12, 1
    v_mov_b32 v13, {D_TEAMBAR*4}
    s_mov_b64 exec, 1
    buffer_atomic_add v12, v13, s[{S_DBG}:{S_DBG+3}], 0 offen
    """)
    a.label("TEAM_BAR_POLL")
    a(f"""
    buffer_load_dword v14, v13, s[{S_DBG}:{S_DBG+3}], 0 offen sc1
    s_waitcnt vmcnt(0)
    v_readfirstlane_b32 s{S_T1}, v14
    s_cmp_lt_u32 s{S_T1}, 32
    s_cbranch_scc1 TEAM_BAR_POLL
    """)
    a(f"v_mov_b32 v13, {FLG+F_KV}")
    a.label("TEAM_KV0_POLL")
    a(f"""
    buffer_load_dword v14, v13, {WSR}, 0 offen sc1
    s_waitcnt vmcnt(0)
    v_readfirstlane_b32 s{S_T1}, v14
    s_lshr_b32 s{S_T1}, s{S_T1}, s{S_H}
    s_bitcmp1_b32 s{S_T1}, 0
    s_cbranch_scc0 TEAM_KV0_POLL
    s_mov_b64 exec, -1
    """)
    a.label("TEAM_BAR_DONE")
    a("s_barrier")
    rt(a, 2)
    a(f"""
    s_mov_b32 s{S_STEP}, 0
    s_lshl_b32 s{S_T1}, s{S_H}, 19
    s_add_u32 s{S_KXO}, s{S_T1}, {KX}
    s_add_u32 s{S_KXO2}, s{S_KXO}, 4096
    s_add_u32 s{S_VXO}, s{S_T1}, {VX}
    s_lshl_b32 s{S_T1}, s{S_H}, 18
    s_add_u32 s{S_KMO}, s{S_T1}, {KM}
    s_lshl_b32 s{S_T1}, s{S_H}, 17
    s_add_u32 s{S_VMO}, s{S_T1}, {VM}
    s_lshl_b32 s{S_T1}, s{S_H}, 7
    s_add_u32 s{S_PWO}, s{S_T1}, {PART}
    s_add_u32 s{S_PW1}, s{S_PWO}, 16384
    s_add_u32 s{S_PW2}, s{S_PWO}, 32768
    s_add_u32 s{S_PW3}, s{S_PWO}, 49152
    s_mul_i32 s{S_T1}, s{S_W}, {18*4096}
    s_add_u32 s{S_PW4}, s{S_PWO}, 65536
    s_add_u32 s{S_PW4}, s{S_PW4}, s{S_T1}
    s_mov_b32 s96, 0
    s_mov_b32 s97, 0
    s_lshl_b32 s{S_JOB}, s{S_W}, 5
    s_add_u32 s{S_JOB}, s{S_JOB}, s{S_H}
    s_mul_i32 s{S_T1}, s{S_JOB}, 43
    s_lshr_b32 s{S_T1}, s{S_T1}, 9
    s_mul_i32 s{S_T1}, s{S_T1}, 6
    s_add_u32 s{S_T1}, s{S_T1}, s{S_JOB}
    s_sub_u32 s{S_T2}, s{S_JOB}, 48
    s_mul_i32 s{S_T3}, s{S_T2}, 43
    s_lshr_b32 s{S_T3}, s{S_T3}, 8
    s_mul_i32 s{S_T3}, s{S_T3}, 12
    s_add_u32 s{S_T2}, s{S_T2}, s{S_T3}
    s_add_u32 s{S_T2}, s{S_T2}, 12
    s_cmp_lt_u32 s{S_JOB}, 48
    s_cselect_b32 s{S_T1}, s{S_T1}, s{S_T2}
    s_and_b32 s{S_T1}, s{S_T1}, 127
    s_lshl_b32 s{S_T1}, s{S_T1}, 12
    s_add_u32 s{S_RDO}, s{S_T1}, {PART}
    s_lshl_b32 s{S_T1}, s{S_JOB}, 7
    s_add_u32 s{S_MWB}, s{S_T1}, {MEM}
    s_lshl_b32 s{S_EOF}, s{S_W}, 11
    s_lshl_b32 s{S_T1}, s{S_H}, 4
    s_lshl_b32 s{S_T2}, s{S_W}, 2
    s_add_u32 s{S_FKM}, s{S_T1}, s{S_T2}
    s_add_u32 s{S_FKM}, s{S_FKM}, {FLG+F_KM}
    """)
    def vx_addr(dst):
        a(f"""
        v_bfe_u32 v{dst}, v{vWl}, 4, 4
        v_lshl_add_u32 v{dst}, s{S_W}, 5, v{dst}
        v_lshlrev_b32 v{dst}, 6, v{dst}
        v_bfe_u32 v{dst+1}, v{vWl}, 8, 2
        v_lshl_add_u32 v{dst}, v{dst+1}, 4, v{dst}
        """)
    def kx_load():
        a(f"buffer_load_dwordx4 v[{KXR}:{KXR+3}], v{vKX}, {WSR}, s{S_KXO} offen")
        a(f"buffer_load_dwordx4 v[{KXR+4}:{KXR+7}], v{vKX}, {WSR}, s{S_KXO2} offen")
    def vx_load(ad):
        a(f"buffer_load_dwordx4 v[{VXR}:{VXR+3}], v{ad}, {WSR}, s{S_VXO} offen")
        a(f"buffer_load_dwordx4 v[{VXR+4}:{VXR+7}], v{ad}, {WSR}, s{S_VXO} offen offset:1024")
    def zero4(r):
        a(f"ds_read_b128 v[{r}:{r+3}], v{vIDX} offset:0" if False else f"ds_read_b128 v[{r}:{r+3}], v{vZero}")
        lg.issue("zero")
    kx_load(); vx_addr(12); vx_load(12)
    for r in range(24): a(f"v_mov_b32 v{ACC[0]+r}, 0")
    a("s_waitcnt vmcnt(0)")

    def w_read(m):
        b = WB[m % 2]
        a(f"ds_read_b128 v[{b}:{b+3}], v{vWl} offset:{2048*m}"); lg.issue(("w", m))
        a(f"ds_read_b128 v[{b+4}:{b+7}], v{vWl} offset:{2048*m+1024}"); lg.issue(("w", m))
    def abslot(kk): return AB[kk % 3]
    def a_read(kk):
        b = abslot(kk)
        a(f"ds_read_b128 v[{b}:{b+3}], v{vSh} offset:{1024*kk}"); lg.issue(("a", kk))
    def smf(T, kk):
        where, what = loc[(1, T, kk)]
        ab = abslot(kk)
        need = [t for t in (("a", kk), ("w", what) if where == "lds" else None) if t and lg.has(t)]
        if need:
            last = max(need, key=lambda t: max(i for i, x in enumerate(lg.q) if x == t))
            lg.wait(last)
        b = vr(WB[what % 2], 8) if where == "lds" else what
        a(f"v_smfmac_f32_16x16x64_bf16 v[{ACC[T]}:{ACC[T]+3}], v[{ab}:{ab+3}], {b}, v{vIDX} abid:1")
        if where == "lds" and what + 2 < 18:
            w_read(what + 2)
    LD, LA = 20, vLane
    w_read(0); w_read(1)
    a("s_waitcnt lgkmcnt(0)")
    a(f"""
    s_mov_b32 s{S_FIRST}, 0x7ff00000
    s_mov_b32 s{S_RDP}, 0x7ff00000
    v_mov_b32 v{LA}, 0x7ff00000
    s_cmp_lt_u32 s{S_W}, 2
    s_cselect_b32 s{S_TCH}, s{S_KXO}, s{S_VXO}
    s_and_b32 s{S_T2}, s{S_W}, 1
    s_lshl_b32 s{S_T2}, s{S_T2}, 12
    s_add_u32 s{S_TCH}, s{S_TCH}, s{S_T2}
    s_add_u32 s{S_TCH}, s{S_TCH}, 8192
    """)
    a.label("TEAM_STEP")
    lg.q = []
    stamp(0)
    a_read(0); a_read(1); a_read(2)
    for n, (T, kk) in enumerate(order[:48]):
        smf(T, kk)
        if kk < 6 and T == 5: a_read(kk + 3)
    stamp(1)
    q0, q1, k0, k1 = ACC[0:4]
    Z = q1
    vt = order[48:]
    smf(*vt[0]); smf(*vt[1])
    for (qq, kq, off) in ((q0, k0, 0), (q1, k1, 128)):
        a(f"""
        v_add_f32 v{qq}, v{qq}, v{qq+1}
        v_add_f32 v{qq+2}, v{qq+2}, v{qq+3}
        v_add_f32 v{kq}, v{kq}, v{kq+1}
        v_add_f32 v{kq+2}, v{kq+2}, v{kq+3}
        v_cvt_pk_bf16_f32 v{qq}, v{qq}, v{qq+2}
        v_cvt_pk_bf16_f32 v{kq}, v{kq}, v{kq+2}
        ds_write2_b32 v{vZw}, v{kq}, v{qq} offset0:{off} offset1:{off+4}
        """); lg.issue("zw")
    a(f"ds_read_b64_tr_b16 v[{Z}:{Z+1}], v{vZr}"); lg.issue("z")
    a(f"ds_read_b64_tr_b16 v[{Z+2}:{Z+3}], v{vZr} offset:128"); lg.issue("z")
    for x in vt[2:]: smf(*x)
    v0_, v1_ = ACC[4], ACC[5]
    VMB = 48
    T0, T1, T2 = q0, k0, k1
    a(f"""
    v_bfe_u32 v61, v{vWl}, 4, 4
    v_lshl_add_u32 v61, s{S_W}, 5, v61
    v_bfe_u32 v60, v{vWl}, 8, 2
    v_lshlrev_b32 v61, 4, v61
    v_lshl_add_u32 v61, v60, 2, v61
    v_mov_b32 v{VMB+1}, 0
    v_mov_b32 v{VMB+3}, 0
    """)
    lg.wait("z")
    a(f"""
    {'s_waitcnt vmcnt(2)' if JIT else ''}
    v_mfma_f32_16x16x32_bf16 v[{T1}:{T1+3}], v[{KXR}:{KXR+3}], v[{Z}:{Z+3}], 0
    v_mfma_f32_16x16x32_bf16 v[{T2}:{T2+3}], v[{KXR+4}:{KXR+7}], v[{Z}:{Z+3}], 0
    v_mfma_f32_16x16x32_bf16 v[{T0}:{T0+3}], v[{Z}:{Z+3}], v[{Z}:{Z+3}], 0
    v_add_f32 v{v0_}, v{v0_}, v{v0_+1}
    v_add_f32 v{v0_+2}, v{v0_+2}, v{v0_+3}
    v_add_f32 v{v1_}, v{v1_}, v{v1_+1}
    v_add_f32 v{v1_+2}, v{v1_+2}, v{v1_+3}
    v_cvt_pk_bf16_f32 v{VMB}, v{v0_}, v{v0_+2}
    v_cvt_pk_bf16_f32 v{VMB+2}, v{v1_}, v{v1_+2}
    ds_write_b128 v{vSw}, v[{T1}:{T1+3}] offset:768
    ds_write_b128 v{vSw}, v[{T2}:{T2+3}] offset:1280
    ds_write_b128 v{vSw}, v[{T0}:{T0+3}]
    buffer_store_dwordx4 v[{Z}:{Z+3}], v{vKX}, {WSR}, s{S_KMO} offen sc1
    buffer_store_dword v{VMB}, v61, {WSR}, s{S_VMO} offen sc1
    buffer_store_dword v{VMB+2}, v61, {WSR}, s{S_VMO} offen offset:256 sc1
    s_cmp_eq_u32 s{S_STEP}, 63
    s_cbranch_scc1 TEAM_LAST
    """)
    stamp(2)
    lg.wait_all()
    a("s_barrier")
    stamp(3)
    X = 12; TZ = 28
    for w2 in range(4):
        a(f"ds_read_b128 v[{X+4*w2}:{X+4*w2+3}], v{vSrX} offset:{L_REG*w2}"); lg.issue(("x", w2))
        a(f"ds_read_b64 v[{TZ+2*w2}:{TZ+2*w2+1}], v{vSr0} offset:{L_REG*w2}"); lg.issue(("x", w2))
    A3 = [36, 40, 44, 12, 16, 20, 24, 48, 52]
    for U in range(3): zero4(A3[U])
    if not JIT:
        a(f"s_add_u32 s{S_T1}, s{S_KXO}, 8192")
        a(f"s_add_u32 s{S_T2}, s{S_KXO2}, 8192")
        a(f"s_add_u32 s{S_T3}, s{S_VXO}, 8192")
        a(f"buffer_load_dwordx4 v[{KXR}:{KXR+3}], v{vKX}, {WSR}, s{S_T1} offen")
        a(f"buffer_load_dwordx4 v[{KXR+4}:{KXR+7}], v{vKX}, {WSR}, s{S_T2} offen")
        a(f"v_lshlrev_b32 v60, 2, v61")
    lg.wait(("x", 1))
    a(f"""
    v_pk_add_f32 v[{X}:{X+1}], v[{X}:{X+1}], v[{X+4}:{X+5}]
    v_pk_add_f32 v[{X+2}:{X+3}], v[{X+2}:{X+3}], v[{X+6}:{X+7}]
    v_pk_add_f32 v[{TZ}:{TZ+1}], v[{TZ}:{TZ+1}], v[{TZ+2}:{TZ+3}]
    """)
    lg.wait(("x", 3))
    a(f"""
    v_pk_add_f32 v[{X+8}:{X+9}], v[{X+8}:{X+9}], v[{X+12}:{X+13}]
    v_pk_add_f32 v[{X+10}:{X+11}], v[{X+10}:{X+11}], v[{X+14}:{X+15}]
    v_pk_add_f32 v[{TZ+4}:{TZ+5}], v[{TZ+4}:{TZ+5}], v[{TZ+6}:{TZ+7}]
    v_pk_add_f32 v[{X}:{X+1}], v[{X}:{X+1}], v[{X+8}:{X+9}]
    v_pk_add_f32 v[{X+2}:{X+3}], v[{X+2}:{X+3}], v[{X+10}:{X+11}]
    v_pk_add_f32 v[{X+4}:{X+5}], v[{TZ}:{TZ+1}], v[{TZ+4}:{TZ+5}]
    """)
    Mx = X + 6; Tm = X + 7
    PX = 28; PM = 32
    O = 52
    a(f"""
    v_max3_f32 v{Mx}, v{X}, v{X+1}, v{X+2}
    v_max3_f32 v{Tm}, v{X+3}, v{X+4}, v{X+5}
    v_max_f32 v{Mx}, v{Mx}, v{Tm}
    """)
    zero4(20); zero4(24)
    a(f"""
    v_max_f32_dpp v{Mx}, v{Mx}, v{Mx} row_ror:8 row_mask:0xf bank_mask:0xf
    v_mov_b32 v{Tm}, v{Mx}
    v_mov_b32 v{PM+1}, 0
    s_nop 0
    v_permlane16_swap_b32 v{Tm}, v{Mx}
    v_max_f32 v{Mx}, v{Mx}, v{Tm}
    v_mov_b32 v{Tm}, v{Mx}
    s_nop 1
    v_permlane32_swap_b32 v{Tm}, v{Mx}
    v_max_f32 v{Mx}, v{Mx}, v{Tm}
    v_mul_f32 v{Mx}, s{S_CEXP}, v{Mx}
    """)
    for r in (4, 5, 0, 1, 2, 3): a(f"v_fma_f32 v{X+r}, v{X+r}, s{S_CEXP}, -v{Mx}")
    for r in (4, 5, 0, 1, 2, 3): a(f"v_exp_f32 v{X+r}, v{X+r}")
    a(f"""
    v_cvt_pk_bf16_f32 v{PM}, v{X+4}, v{X+5}
    v_cvt_pk_bf16_f32 v{PX}, v{X}, v{X+1}
    v_cvt_pk_bf16_f32 v{PX+1}, v{X+2}, v{X+3}
    v_add_f32 v{Mx}, v{X+4}, v{X+5}
    v_mfma_f32_16x16x16_bf16 v[{O}:{O+3}], v[{VMB}:{VMB+1}], v[{PM}:{PM+1}], 0
    v_mov_b32_dpp v{PX+2}, v{PX} row_ror:8 row_mask:0xf bank_mask:0xf
    v_mov_b32_dpp v{PX+3}, v{PX+1} row_ror:8 row_mask:0xf bank_mask:0xf
    v_mfma_f32_16x16x16_bf16 v[{O+4}:{O+7}], v[{VMB+2}:{VMB+3}], v[{PM}:{PM+1}], 0
    v_add_f32 v{Tm}, v{X}, v{X+1}
    v_fma_f32 v{Mx}, v{Mx}, 0.5, v{Tm}
    v_add_f32 v{Tm}, v{X+2}, v{X+3}
    v_add_f32 v{Mx}, v{Mx}, v{Tm}
    v_mfma_f32_16x16x32_bf16 v[{O}:{O+3}], v[{VXR}:{VXR+3}], v[{PX}:{PX+3}], v[{O}:{O+3}]
    v_mfma_f32_16x16x32_bf16 v[{O+4}:{O+7}], v[{VXR+4}:{VXR+7}], v[{PX}:{PX+3}], v[{O+4}:{O+7}]
    v_add_f32_dpp v{Mx}, v{Mx}, v{Mx} row_ror:8 row_mask:0xf bank_mask:0xf
    v_mov_b32 v{Tm}, v{Mx}
    """)
    zero4(12); zero4(48)
    a(f"""
    v_permlane16_swap_b32 v{Tm}, v{Mx}
    v_add_f32 v{Mx}, v{Mx}, v{Tm}
    v_mov_b32 v{Tm}, v{Mx}
    {"s_nop 1" if JIT else f"buffer_load_dwordx4 v[{VXR}:{VXR+3}], v60, {WSR}, s{S_T3} offen"}
    {"" if JIT else f"buffer_load_dwordx4 v[{VXR+4}:{VXR+7}], v60, {WSR}, s{S_T3} offen offset:1024"}
    v_permlane32_swap_b32 v{Tm}, v{Mx}
    v_add_f32 v{Mx}, v{Mx}, v{Tm}
    v_rcp_f32 v{Mx}, v{Mx}
    s_nop 0
    v_mov_b32 v{Tm}, v{Mx}
    """)
    for p in range(4): a(f"v_pk_mul_f32 v[{O+2*p}:{O+2*p+1}], v[{O+2*p}:{O+2*p+1}], v[{Mx}:{Tm}]")
    OP = 60
    for p in range(4): a(f"v_cvt_pk_bf16_f32 v{OP+p}, v{O+2*p}, v{O+2*p+1}")
    a(f"ds_write_b128 v{vSw}, v[{OP}:{OP+3}] offset:256")
    zero4(16); zero4(52)
    stamp(4)
    a("s_waitcnt lgkmcnt(0)")
    a("s_barrier")
    stamp(5)
    AO = 56
    a(f"ds_read_b128 v[{AO}:{AO+3}], v{vOr}")
    a(f"ds_read_b128 v[{AO+4}:{AO+7}], v{vOr} offset:{2*L_REG}")
    RL = 35
    a(f"""
    v_bfe_u32 v28, v{vWl}, 7, 1
    v_lshlrev_b32 v28, 12, v28
    v_bfe_u32 v29, v{vWl}, 6, 1
    v_lshl_add_u32 v28, v29, 6, v28
    v_bfe_u32 v29, v{vWl}, 8, 2
    v_lshl_add_u32 v28, v29, 4, v28
    v_bfe_u32 v29, v{vWl}, 5, 1
    v_lshl_add_u32 v28, v29, 3, v28
    v_bfe_u32 v29, v{vWl}, 4, 1
    v_lshl_add_u32 v28, v29, 30, v28
    v_and_b32 v{RL}, 0x70, v{vWl}
    v_bfe_u32 v29, v{vWl}, 7, 3
    v_lshl_add_u32 v{RL}, v29, 9, v{RL}
    """)
    a("s_waitcnt lgkmcnt(0)" if dbg_time else "s_waitcnt lgkmcnt(1)")
    PWS = [S_PWO, S_PW1, S_PW2, S_PW3]
    def pair_out(pp):
        Ua, Ub = A3[2 * pp], A3[2 * pp + 1]
        return [f"v_add_f32 v{Ua}, v{Ua}, v{Ua+1}",
             f"v_add_f32 v{Ua+2}, v{Ua+2}, v{Ua+3}",
             f"v_add_f32 v{Ub}, v{Ub}, v{Ub+1}",
             f"v_add_f32 v{Ub+2}, v{Ub+2}, v{Ub+3}",
             f"v_cvt_pk_bf16_f32 v{Ua}, v{Ua}, v{Ub}",
             f"v_cvt_pk_bf16_f32 v{Ua+1}, v{Ua+2}, v{Ub+2}",
             f"buffer_store_dwordx2 v[{Ua}:{Ua+1}], v{vPW}, {WSR}, s{PWS[pp]} offen"]
    U8 = A3[8]
    t8 = [f"v_add_f32 v{U8}, v{U8}, v{U8+1}",
          f"v_add_f32 v{U8+1}, v{U8+2}, v{U8+3}",
          f"s_add_u32 s{S_STEP}, s{S_STEP}, 1",
          f"v_mov_b32_dpp v{U8+2}, v{U8} quad_perm:[1,0,3,2] row_mask:0xf bank_mask:0xf",
          f"v_mov_b32_dpp v{U8+3}, v{U8+1} quad_perm:[1,0,3,2] row_mask:0xf bank_mask:0xf",
          f"v_cvt_pk_bf16_f32 v{U8}, v{U8}, v{U8+2}",
          f"v_cvt_pk_bf16_f32 v{U8+1}, v{U8+1}, v{U8+3}",
          f"buffer_store_dwordx2 v[{U8}:{U8+1}], v28, {WSR}, s{S_PW4} offen"]
    pend = []
    first = True
    seq = [0, 1, 2, 3, 4, 5, 8, 6, 7]
    for n, U in enumerate(seq):
        a(f"v_smfmac_f32_16x16x64_bf16 v[{A3[U]}:{A3[U]+3}], v[{AO}:{AO+3}], {loc[(3,U,0)][1]}, v{vIDX} abid:1")
        if first: a("s_waitcnt lgkmcnt(0)"); first = False
        for _ in range(2):
            if pend: a(pend.pop(0))
        a(f"v_smfmac_f32_16x16x64_bf16 v[{A3[U]}:{A3[U]+3}], v[{AO+4}:{AO+7}], {loc[(3,U,1)][1]}, v{vIDX} abid:1")
        for _ in range(2):
            if pend: a(pend.pop(0))
        if n == 2: pend += pair_out(0)
        if n == 4: pend += pair_out(1)
        if n == 6: pend += pair_out(2)
    for x in pend: a(x)
    for x in t8: a(x)
    for x in pair_out(3): a(x)
    stamp(6)
    SEL = 28; D = 40; SA = 12; RO = 46
    P0, P2, P1, P3 = 38, 39, 33, 34
    def w1_loads(b, masked=False):
        if dbg_time: a("s_add_u32 s96, s96, 1")
        for hh in range(4):
            if masked: a(f"s_mov_b64 exec, s[{84+2*hh}:{85+2*hh}]")
            a(f"buffer_load_dwordx4 v[{b+4*hh}:{b+3+4*hh}], v{RL}, {WSR}, s{S_RDO} offen offset:{128*hh} sc1")
        if masked: a("s_mov_b64 exec, -1")
    book = f"""
    s_add_u32 s{S_KMO}, s{S_KMO}, 4096
    s_add_u32 s{S_VMO}, s{S_VMO}, 2048
    s_add_u32 s{S_KXO}, s{S_KXO}, 8192
    s_add_u32 s{S_KXO2}, s{S_KXO2}, 8192
    s_add_u32 s{S_VXO}, s{S_VXO}, 8192
    s_mov_b32 s{S_T2}, {PART_SLOT}
    s_sub_u32 s{S_T3}, 0, s{S_T2}
    s_bitcmp1_b32 s{S_STEP}, 0
    s_cselect_b32 s{S_T0}, s{S_T2}, s{S_T3}
    s_add_u32 s{S_PWO}, s{S_PWO}, s{S_T0}
    s_add_u32 s{S_PW1}, s{S_PW1}, s{S_T0}
    s_add_u32 s{S_PW2}, s{S_PW2}, s{S_T0}
    s_add_u32 s{S_PW3}, s{S_PW3}, s{S_T0}
    s_add_u32 s{S_PW4}, s{S_PW4}, s{S_T0}
    v_and_b32 v{P0}, 0x3f0, v{vWl}
    s_add_u32 s{S_T3}, s{S_EOF}, {L_SH}
    v_add_u32 v{P2}, s{S_T3}, v{P0}
    s_add_u32 s{S_TCH}, s{S_TCH}, 8192
    s_and_b32 s{S_T2}, s{S_STEP}, {3 if RING else 127}
    s_mul_i32 s{S_T2}, s{S_T2}, 9216
    s_add_u32 s{S_MEMW}, s{S_MWB}, s{S_T2}
    s_add_u32 s{S_MEMR3}, s{S_T2}, {MEM+8192}
    s_add_u32 s{S_MEMR}, s{S_T2}, s{S_EOF}
    s_add_u32 s{S_MEMR}, s{S_MEMR}, {MEM}
    s_add_u32 s{S_T2}, s{S_STEP}, 3
    s_and_b32 s{S_T2}, s{S_T2}, 3
    s_mul_i32 s{S_T2}, s{S_T2}, 9216
    s_add_u32 s{S_FIRST}, s{S_MWB}, s{S_T2}
    v_and_b32 v{P1}, 0xf0, v{P0}
    s_lshl_b32 s{S_T3}, s{S_W}, 8
    s_add_u32 s{S_MEMR3}, s{S_MEMR3}, s{S_T3}
    s_add_u32 s{S_T3}, s{S_T3}, {L_SH+8192}
    v_add_u32 v{P3}, s{S_T3}, v{P1}
    """
    selcalc = f"""
    v_and_b32 v{RO}, 16, v{vWl}
    v_mov_b32 v36, 0x3f80
    v_lshlrev_b32 v{RO}, v{RO}, v36
    v_bfe_u32 v36, v{vWl}, 5, 3
    v_cmp_eq_u32 vcc, 0, v36
    v_cmp_eq_u32 s[98:99], 1, v36
    v_cmp_eq_u32 s[100:101], 2, v36
    v_cndmask_b32 v{SEL}, 0, v{RO}, vcc
    v_cmp_eq_u32 vcc, 3, v36
    v_cndmask_b32 v{SEL+1}, 0, v{RO}, s[98:99]
    v_cndmask_b32 v{SEL+2}, 0, v{RO}, s[100:101]
    v_cndmask_b32 v{SEL+3}, 0, v{RO}, vcc
    v_bfe_u32 v{RO}, v{vWl}, 6, 1
    v_lshlrev_b32 v{RO}, 3, v{RO}
    v_bfe_u32 v36, v{vWl}, 8, 1
    v_lshl_add_u32 v{RO}, v36, 2, v{RO}
    v_bfe_u32 v36, v{vWl}, 4, 2
    v_lshl_add_u32 v{RO}, v36, 5, v{RO}
    v_and_b32 v36, 0x280, v{vWl}
    v_lshl_add_u32 v{RO}, v36, 21, v{RO}
    """
    a(book)
    a(f"s_cmp_ge_u32 s{S_JOB}, 72")
    a("s_cbranch_scc1 TEAM_NOJOB")
    a(selcalc)
    if W1_PRE: a(f"s_sleep {W1_PRE}")
    w1_loads(SA)
    a.label("TEAM_W1")
    for hh in range(4):
        a(f"s_waitcnt vmcnt({3 - hh})")
        a(f"v_mfma_f32_16x16x32_bf16 v[{D}:{D+3}], v[{SEL}:{SEL+3}], v[{SA+4*hh}:{SA+3+4*hh}], {'0' if hh == 0 else vr(D,4)}")
    def masks():
        for hh in range(4):
            b = SA + 4 * hh
            a(f"v_max3_u32 v{48+hh}, v{b}, v{b+1}, v{b+2}")
            a(f"v_max_u32 v{48+hh}, v{48+hh}, v{b+3}")
        for hh in range(4):
            a(f"v_cmp_eq_u32 s[{84+2*hh}:{85+2*hh}], -1, v{48+hh}")
    if not W1FAST: masks()
    for r in range(4):
        a(f"v_add_f32_dpp v{D+r}, v{D+r}, v{D+r} row_ror:8 row_mask:0xf bank_mask:0xf")
    a(f"""
    v_cvt_pk_bf16_f32 v{D+4}, v{D}, v{D+1}
    v_cvt_pk_bf16_f32 v{D+5}, v{D+2}, v{D+3}
    """)
    if W1FAST:
        a(f"v_cmp_u_f32 vcc, v{D}, v{D+2}")
        a("s_cbranch_vccz TEAM_W1_OK")
        masks()
    a(f"""
    s_or_b64 s[92:93], s[84:85], s[86:87]
    s_or_b64 s[94:95], s[88:89], s[90:91]
    s_or_b64 s[92:93], s[92:93], s[94:95]
    s_cbranch_scc0 TEAM_W1_OK
    """)
    w1_loads(SA, True)
    a("s_waitcnt vmcnt(0)")
    a("s_branch TEAM_W1")
    a.label("TEAM_W1_OK")
    stamp(7)
    a(f"""
    buffer_store_dword v{D+4}, v{RO}, {WSR}, s{S_MEMW} offen
    buffer_store_dword v{D+5}, v{RO}, {WSR}, s{S_MEMW} offen offset:16
    s_mov_b32 s{S_RDP}, s{S_RDO}
    s_branch TEAM_W2PRE
    """)
    a.label("TEAM_NOJOB")
    a(f"""
    s_cmp_lg_u32 s{S_W}, 3
    s_cbranch_scc1 TEAM_W2PRE
    s_add_u32 s{S_T1}, s{S_STEP}, 2
    s_and_b32 s{S_T2}, s{S_T1}, 3
    s_cmp_lg_u32 s{S_T2}, 0
    s_cbranch_scc1 TEAM_W2PRE
    s_cmp_ge_u32 s{S_T1}, 64
    s_cbranch_scc1 TEAM_W2PRE
    s_lshl_b32 s{S_T1}, s{S_T1}, 4
    v_mov_b32 v12, {FLG+F_KV}
    """)
    a.label("TEAM_KVP")
    a(f"""
    buffer_load_dword v13, v12, {WSR}, s{S_T1} offen sc1
    s_waitcnt vmcnt(0)
    v_readfirstlane_b32 s{S_T2}, v13
    s_lshr_b32 s{S_T2}, s{S_T2}, s{S_H}
    s_bitcmp1_b32 s{S_T2}, 0
    s_cbranch_scc0 TEAM_KVP
    """)
    a.label("TEAM_W2PRE")
    def w2_loads(b, masked=False):
        if dbg_time: a("s_add_u32 s97, s97, 1")
        for k, (ad, so, off) in enumerate(((P0, S_MEMR, ""), (P0, S_MEMR, " offset:1024"), (P1, S_MEMR3, ""))):
            if masked: a(f"s_mov_b64 exec, s[{84+2*k}:{85+2*k}]")
            a(f"buffer_load_dwordx4 v[{b+4*k}:{b+4*k+3}], v{ad}, {WSR}, s{so} offen{off} sc1")
        if masked: a("s_mov_b64 exec, -1")
    lg.q = []
    for r in (0, 1): zero4(ACC[r])
    w_read(0); w_read(1)
    a(f"""
    s_add_u32 s{S_RDO}, s{S_RDO}, s{S_T0}
    v_mov_b32 v40, -1
    v_mov_b32 v41, -1
    v_mov_b32 v42, -1
    v_mov_b32 v43, -1
    v_mov_b32 v44, s{S_STEP}
    v_mov_b32 v45, s{S_FKM}
    """)
    a(f"v_lshlrev_b32 v47, 2, v{P0}")
    if W2_PRE: a(f"s_sleep {W2_PRE}")
    w2_loads(SA)
    a.label("TEAM_W2")
    for k in range(3):
        b = SA + 4 * k
        a(f"s_waitcnt vmcnt({2-k})")
        a(f"ds_write_b128 v{P2 if k < 2 else P3}, v[{b}:{b+3}]{' offset:1024' if k == 1 else ''}")
        a(f"v_max3_u32 v36, v{b}, v{b+1}, v{b+2}")
        a(f"v_max_u32 v36, v36, v{b+3}")
        a(f"v_cmp_eq_u32 s[{84+2*k}:{85+2*k}], -1, v36")
    a(f"""
    s_or_b64 s[92:93], s[84:85], s[86:87]
    s_or_b64 s[92:93], s[92:93], s[88:89]
    s_cbranch_scc0 TEAM_W2_OK
    s_and_b64 s[94:95], s[84:85], s[86:87]
    s_cmp_eq_u64 s[94:95], -1
    s_cbranch_scc0 TEAM_W2_RE
    s_sleep {max(W2_GAP,1)}
    """)
    a.label("TEAM_W2_RE")
    w2_loads(SA, True)
    a("s_waitcnt vmcnt(0)")
    a("s_branch TEAM_W2")
    a.label("TEAM_W2_OK")
    stamp(9)
    if dbg_time:
        a(f"""
        s_waitcnt lgkmcnt(0)
        s_lshl_b32 s{S_T1}, s{S_STEP}, 7
        s_lshl_b32 s{S_T2}, s{S_H}, 2
        s_add_u32 s{S_T1}, s{S_T1}, s{S_T2}
        s_add_u32 s{S_T1}, s{S_T1}, s{S_W}
        s_lshl_b32 s{S_T1}, s{S_T1}, 6
        s_add_u32 s{S_T1}, s{S_T1}, 0x7000000
        """)
        for i in range(10):
            a(f"v_writelane_b32 v36, s{64+2*i}, {i}")
        a(f"v_writelane_b32 v36, s96, 12")
        a(f"v_writelane_b32 v36, s97, 13")
        a(f"v_bfe_u32 v37, v{vWl}, 2, 8")
        a(f"s_mov_b64 exec, 0xffff")
        a(f"buffer_store_dword v36, v37, {WSR}, s{S_T1} offen")
        a(f"s_mov_b64 exec, -1")
    rt(a, 16, S_STEP)
    a(f"""
    s_cmp_ge_u32 s{S_JOB}, 72
    s_waitcnt lgkmcnt(0)
    s_barrier
    s_cbranch_scc1 TEAM_NORESET
    buffer_store_dwordx4 v[40:43], v{RL}, {WSR}, s{S_RDP} offen
    buffer_store_dwordx4 v[40:43], v{RL}, {WSR}, s{S_RDP} offen offset:128
    buffer_store_dwordx4 v[40:43], v{RL}, {WSR}, s{S_RDP} offen offset:256
    buffer_store_dwordx4 v[40:43], v{RL}, {WSR}, s{S_RDP} offen offset:384
    s_mov_b64 exec, 0xff
    buffer_store_dwordx4 v[40:43], v{RL}, {WSR}, s{S_FIRST} offen
    s_mov_b64 exec, -1
    """)
    a.label("TEAM_NORESET")
    a(f"""
    buffer_store_dword v44, v45, {WSR}, 0 offen sc1
    buffer_load_dword v{vLane}, v47, {WSR}, s{S_TCH} offen
    """)
    for r in (2, 3, 4, 5): zero4(ACC[r])
    a("s_branch TEAM_STEP")
    a.label("TEAM_LAST")
    rt(a, 3)
    a(f"""
    s_waitcnt vmcnt(0) lgkmcnt(0)
    v_mov_b32 v28, 64
    v_mov_b32 v29, s{S_FKM}
    buffer_store_dword v28, v29, {WSR}, 0 offen sc1
    s_endpgm
    """)
```

```python
from asmlib import *
from layout import *

class Q:
    def __init__(self, a, name, maxc):
        self.a = a; self.name = name; self.maxc = maxc; self.q = []
    def issue(self, tag):
        self.q.append(tag)
    def wait(self, tag):
        if tag not in self.q: return
        idx = max(i for i, t in enumerate(self.q) if t == tag)
        n = len(self.q) - 1 - idx
        assert n <= self.maxc, (self.name, tag, n)
        self.a(f"s_waitcnt {self.name}({n})")
        self.q = self.q[idx + 1:]
    def wait_all(self):
        self.a(f"s_waitcnt {self.name}(0)")
        self.q = []
    def has(self, tag):
        return tag in self.q

S_WS = 4; S_DBG = 8; S_A = 12; S_B = 16; S_C = 20; S_D = 24; S_OUT = 28
S_W = 32
S_H = 33
S_STEP = 34
S_T0 = 35; S_T1 = 36; S_T2 = 37; S_T3 = 38
S_MHG = 40
S_CEXP = 50
S_KXO = 52; S_VXO = 53; S_KMO = 54; S_VMO = 55; S_PWO = 56; S_RDO = 57; S_MEMW = 58; S_MEMR = 59
S_JOB = 60; S_FKM = 61; S_KXO2 = 62; S_MEMR3 = 63
S_PW1 = 42; S_PW2 = 43; S_PW3 = 44; S_PW4 = 45
OOB = 0x7ff00000
import sys
RT = '--rt' in sys.argv
DBGT = 0x7800000
def rt(a, idx, sidx=None):
    if not RT: return
    a(f"""
    s_memrealtime s[92:93]
    s_lshl_b32 s94, s2, 10
    s_add_u32 s94, s94, {DBGT + 4*idx}
    s_waitcnt lgkmcnt(0)
    """)
    if sidx is not None:
        a(f"s_lshl_b32 s95, s{sidx}, 2")
        a(f"s_add_u32 s94, s94, s95")
    a(f"""
    v_mov_b32 v22, s92
    v_mov_b32 v23, 0
    buffer_store_dword v22, v23, s[{S_WS}:{S_WS+3}], s94 offen
    """)

import os
W1_GAP = int(os.environ.get('W1_GAP', 0)); W2_GAP = int(os.environ.get('W2_GAP', 0))
W1_PRE = int(os.environ.get('W1_PRE', 0)); W2_PRE = int(os.environ.get('W2_PRE', 0)); NJ_PRE = int(os.environ.get('NJ_PRE', 0))
MEMAHEAD = int(os.environ.get('MEMAHEAD', 0))
ABID = 1
RING = int(os.environ.get('RING', 1)); JIT = int(os.environ.get('JIT', 0))
S_TCH = 47; S_EOF = 46; S_FIRST = 48; S_RDP = 49; S_MWB = 51
LATE_I1 = int(os.environ.get('LATE_I1', 10)); LATE_C1 = int(os.environ.get('LATE_C1', 26))

def frag_regs():
    loc = {}
    regs = [ar(8 * i, 8) for i in range(32)] + [vr(80 + 8 * i, 8) for i in range(22)]
    ri = 0; m = 0
    order = [(T, kk) for kk in range(6) for T in range(6)]
    order += [(T, kk) for kk in (6, 7, 8) for T in (0, 2, 1, 3)]
    order += [(T, kk) for kk in (6, 7, 8) for T in (4, 5)]
    for n, (T, kk) in enumerate(order):
        if n % 3 == 2:
            loc[(1, T, kk)] = ("lds", m); m += 1
        else:
            loc[(1, T, kk)] = ("reg", regs[ri]); ri += 1
    for U in range(9):
        for ks in range(2):
            loc[(3, U, ks)] = ("reg", regs[ri]); ri += 1
    assert m == 18 and ri == 54
    return loc, order

def line_of(sig):
    if sig < 48: return 18 * (sig // 12) + sig % 12
    sp = sig - 48
    return 18 * (sp // 6) + 12 + sp % 6

def sub(reg8):
    k = reg8[0]; lo = int(reg8[2:reg8.index(":")])
    return k, lo

def rng(k, lo, n):
    return f"{k}[{lo}:{lo+n-1}]" if n > 1 else f"{k}{lo}"

def gen_team(a, dbg_time=False):
    loc, order = frag_regs()
    vIDX, vWl, vSh, vZw, vZr, vSw, vSrX, vSr0, vOr, vLane, vPW, vKX = range(12)
    vZero = vIDX
    AB = [12, 16, 20]
    ACC = [24, 28, 32, 36, 40, 44]
    WB = [48, 56]
    KXR = 64; VXR = 72
    WSR = f"s[{S_WS}:{S_WS+3}]"
    lg = Q(a, "lgkmcnt", 15); vm = Q(a, "vmcnt", 63)
    def stamp(i):
        if dbg_time: a(f"{'s_memrealtime' if '--real' in sys.argv else 's_memtime'} s[{64+2*i}:{65+2*i}]") if i < 10 else None

    a.label("TEAM")
    rt(a, 0)
    stamp(10)
    a(f"v_and_b32 v{vLane}, 63, v0")
    a(f"v_mov_b32 v79, v0")
    L = f"v{vLane}"
    a(f"""
    v_and_b32 v12, 15, {L}            ; i
    v_lshrrev_b32 v13, 4, {L}         ; g
    v_and_b32 v14, 7, {L}             ; i&7
    v_bfe_u32 v15, {L}, 3, 1          ; i>>3
    v_lshrrev_b32 v16, 5, {L}         ; lane>>5 = g>>1
    v_and_b32 v17, 1, v13             ; g&1
    v_and_b32 v22, 1, {L}             ; hf = i&1
    v_lshrrev_b32 v23, 1, v12         ; t = i>>1
    s_mul_i32 s{S_T0}, s{S_W}, {L_REG}
    s_add_u32 s{S_T0}, s{S_T0}, {L_SC}        ; scratch region of this wave
    v_mov_b32 v18, {0x44440000 if ABID else 0x00104444}
    v_mov_b32 v19, {0xeeee0000 if ABID else 0x0010eeee}
    v_cmp_lt_u32 vcc, 0, v22
    v_cndmask_b32 v{vIDX}, v18, v19, vcc
    s_mul_i32 s{S_T1}, s{S_W}, 36864
    v_lshlrev_b32 v18, 4, {L}
    v_add_u32 v{vWl}, s{S_T1}, v18
    v_lshlrev_b32 v20, 8, v13
    v_lshl_add_u32 v20, v22, 7, v20
    v_lshl_add_u32 v20, v23, 4, v20
    v_add_u32 v{vSh}, {L_SH}, v20
    ; vZw = region + n*32 + g*4
    v_lshlrev_b32 v20, 5, v12
    v_lshl_add_u32 v20, v13, 2, v20
    v_add_u32 v{vZw}, s{S_T0}, v20
    v_bfe_u32 v20, {L}, 2, 2          ; r
    v_lshl_add_u32 v20, v13, 3, v20   ; 8g+r
    v_lshlrev_b32 v20, 5, v20
    v_and_b32 v21, 3, {L}
    v_lshl_add_u32 v20, v21, 3, v20
    v_add_u32 v{vZr}, s{S_T0}, v20
    v_lshl_add_u32 v20, v13, 3, v14   ; g*8+(i&7)
    v_lshlrev_b32 v20, 4, v20
    v_add_u32 v21, s{S_T0}, v20
    v_mov_b32 v19, 0x40000
    v_cmp_lt_u32 vcc, 0, v15          ; i>=8
    v_cndmask_b32 v{vSw}, v19, v21, vcc
    v_mov_b32 v19, 1280
    v_mov_b32 v21, 768
    v_cndmask_b32 v19, v19, v21, vcc
    v_add3_u32 v{vSrX}, v20, v19, 0
    v_add_u32 v{vSrX}, {L_SC}, v{vSrX}
    v_lshl_add_u32 v20, v16, 3, v14
    v_lshlrev_b32 v20, 4, v20
    v_lshl_add_u32 v20, v17, 3, v20
    v_add_u32 v{vSr0}, {L_SC}, v20
    v_lshl_add_u32 v20, v17, 1, v22
    v_lshl_add_u32 v20, v20, 3, v23
    v_lshlrev_b32 v20, 4, v20
    v_mul_u32_u24 v21, {L_REG}, v16
    v_add3_u32 v{vOr}, v20, v21, 0
    v_add_u32 v{vOr}, {L_SC+256}, v{vOr}
    ; vPW = (18w + (n>>2))*4096 + ((n>>1)&1)*64 + g*16 + (n&1)*8
    s_mul_i32 s{S_T1}, s{S_W}, 18
    v_lshrrev_b32 v20, 2, v12
    v_add_u32 v20, s{S_T1}, v20
    v_lshlrev_b32 v20, 12, v20
    v_bfe_u32 v21, v12, 1, 1
    v_lshl_add_u32 v20, v21, 6, v20
    v_lshl_add_u32 v20, v13, 4, v20
    v_lshl_add_u32 v{vPW}, v22, 3, v20
    ; vKX = i*256 + w*64 + g*16
    v_lshlrev_b32 v20, 8, v12
    v_lshl_add_u32 v20, v13, 4, v20
    s_lshl_b32 s{S_T1}, s{S_W}, 6
    v_add_u32 v{vKX}, s{S_T1}, v20
    s_mov_b32 s{S_MHG}, 0x00f000f0
    s_mov_b32 s{S_MHG+1}, 0x00f000f0
    s_mov_b32 s{S_CEXP}, 0x3e0293ee
    """)
    a(f"""
    v_lshrrev_b32 v24, 4, v79         ; rho0
    v_and_b32 v25, 15, v79            ; cc
    v_and_b32 v26, 7, v24
    v_bfe_u32 v27, v24, 3, 1
    v_lshlrev_b32 v27, 1, v27
    v_xor_b32 v26, v26, v27           ; key1
    v_lshlrev_b32 v26, 1, v26
    v_xor_b32 v26, v25, v26           ; pos
    v_lshlrev_b32 v26, 4, v26
    v_lshl_add_u32 v26, v24, 8, v26
    v_add_u32 v28, {L_SH}, v26
    v_and_b32 v27, 1, v24
    v_bfe_u32 v26, v24, 2, 1
    v_lshl_add_u32 v27, v26, 1, v27
    v_lshlrev_b32 v27, 1, v27
    v_xor_b32 v26, v25, v27
    v_lshlrev_b32 v26, 4, v26
    v_lshl_add_u32 v26, v24, 8, v26
    v_add_u32 v29, {L_SH}, v26
    v_xor_b32 v30, 128, v29           ; u odd
    v_and_b32 v26, 12, v25
    v_bfe_u32 v31, v25, 1, 1
    v_or_b32 v26, v26, v31
    v_xor_b32 v26, v26, v27
    v_lshlrev_b32 v26, 4, v26
    v_and_b32 v31, 1, v25
    v_lshl_add_u32 v26, v31, 3, v26
    v_lshl_add_u32 v26, v24, 8, v26
    v_add_u32 v18, {L_SH}, v26
    v_xor_b32 v19, 32, v18
    v_xor_b32 v20, 128, v18
    v_xor_b32 v21, 160, v18
    v_lshlrev_b32 v31, 13, v24
    v_lshl_add_u32 v31, v25, 4, v31
    v_mul_u32_u24 v26, 1152, v24
    v_lshrrev_b32 v27, 2, v25
    v_mul_u32_u24 v27, 288, v27
    v_and_b32 v25, 3, v25
    v_lshl_add_u32 v27, v25, 4, v27
    v_add_u32 v79, v26, v27
    """)
    a(f"""
    v_bfe_u32 v32, {L}, 2, 2          ; r
    v_and_b32 v33, 3, {L}             ; c
    v_lshrrev_b32 v34, 1, v32         ; r>>1
    v_and_b32 v35, 1, v32             ; r&1
    v_lshrrev_b32 v36, 1, v13         ; gb>>1
    s_lshl_b32 s{S_T1}, s{S_W}, 2     ; 4w
    """)
    RA1 = [40, 41, 42, 43]
    RA3 = [44, 45, 46, 47]
    for mp in range(2):
        a(f"""
        v_lshl_add_u32 v37, v17, 2, v35       ; 4*(gb&1) + (r&1)
        v_add_u32 v37, {2*mp}, v37            ; 2j + (r&1)
        v_lshl_add_u32 v38, v34, 3, v37       ; rho15
        v_lshl_add_u32 v38, v36, 4, v38       ; + 16*(gb>>1)
        v_lshlrev_b32 v39, 1, v34
        v_xor_b32 v37, v37, v39               ; key
        v_lshlrev_b32 v37, 1, v37
        v_lshrrev_b32 v39, 1, v33
        v_add_u32 v39, s{S_T1}, v39           ; 4w + (c>>1)
        v_xor_b32 v37, v37, v39
        v_lshlrev_b32 v37, 4, v37
        v_lshl_add_u32 v37, v38, 8, v37
        v_and_b32 v39, 1, v33
        v_lshl_add_u32 v37, v39, 3, v37
        v_add_u32 v{RA1[2*mp]}, {L_SH}, v37
        v_xor_b32 v{RA1[2*mp+1]}, 32, v{RA1[2*mp]}
        """)
        a(f"""
        v_lshl_add_u32 v38, v17, 4, v35
        v_lshl_add_u32 v38, v36, 3, v38
        v_lshl_add_u32 v38, v34, 2, v38
        v_add_u32 v38, {2*mp}, v38
        v_lshl_add_u32 v37, v34, 1, v35
        v_lshl_add_u32 v37, v17, 2, v37       ; key
        v_lshlrev_b32 v37, 1, v37
        v_lshrrev_b32 v39, 1, v33
        v_add_u32 v39, s{S_T1}, v39
        v_xor_b32 v37, v37, v39
        v_lshlrev_b32 v37, 4, v37
        v_lshl_add_u32 v37, v38, 8, v37
        v_and_b32 v39, 1, v33
        v_lshl_add_u32 v37, v39, 3, v37
        v_add_u32 v{RA3[2*mp]}, {L_SH}, v37
        v_xor_b32 v{RA3[2*mp+1]}, 32, v{RA3[2*mp]}
        """)
    a(f"""
    v_mov_b32 v39, v79
    v_mov_b32 v32, v18
    v_mov_b32 v33, v19
    v_mov_b32 v34, v20
    v_mov_b32 v35, v21
    s_mov_b32 s{S_T2}, 0x05040100
    s_mov_b32 s{S_T3}, 0x07060302
    """)
    stages = []
    for mat in range(3):
        for kk in range(9):
            stages.append((1, mat, kk))
    for ks in range(2):
        for up in range(5):
            stages.append((3, ks, up))
    LB = [48, 64]
    TMPF = 12
    SRDS = [S_A, S_B, S_C]
    def issue_loads(n):
        kind, x, y = stages[n]
        b = LB[n % 2]
        if kind == 1:
            a(f"s_lshl_b32 s{S_T0}, s{S_H}, 8")
            for u in range(4):
                a(f"s_add_u32 s{S_T1}, s{S_T0}, {8*line_of(8*y+2*u)*8192}")
                a(f"buffer_load_dwordx4 v[{b+4*u}:{b+4*u+3}], v31, s[{SRDS[x]}:{SRDS[x]+3}], s{S_T1} offen")
                vm.issue(("ld", n))
        else:
            a(f"s_mul_i32 s{S_T1}, s{S_H}, 147456")
            a(f"s_add_u32 s{S_T1}, s{S_T1}, {x*64*1152 + y*64}")
            for u in range(4):
                a(f"buffer_load_dwordx4 v[{b+4*u}:{b+4*u+3}], v39, s[{S_D}:{S_D+3}], s{S_T1} offen")
                vm.issue(("ld", n))
                if u < 3: a(f"s_add_u32 s{S_T1}, s{S_T1}, {16*1152}")
    vm.q = []
    issue_loads(0); issue_loads(1)
    for n, (kind, x, y) in enumerate(stages):
        b = LB[n % 2]
        vm.wait(("ld", n))
        for u in range(4):
            d = b + 4 * u
            if kind == 3 and y < 4:
                a(f"""
                v_perm_b32 v12, v{d+1}, v{d}, s{S_T2}
                v_perm_b32 v13, v{d+3}, v{d+2}, s{S_T2}
                v_perm_b32 v14, v{d+1}, v{d}, s{S_T3}
                v_perm_b32 v15, v{d+3}, v{d+2}, s{S_T3}
                ds_write_b64 v{32 + 2*(u%2)}, v[12:13] offset:{4096*u}
                ds_write_b64 v{33 + 2*(u%2)}, v[14:15] offset:{4096*u}
                """)
            else:
                wa = 28 if kind == 1 else (29 if u % 2 == 0 else 30)
                a(f"ds_write_b128 v{wa}, v[{d}:{d+3}] offset:{4096*u}")
        a("s_waitcnt lgkmcnt(0)")
        a("s_barrier")
        if n + 2 < len(stages): issue_loads(n + 2)
        RA = RA1 if kind == 1 else RA3
        ntiles = 2 if not (kind == 3 and y == 4) else 1
        wb = []
        for nt in range(ntiles):
            key = (1, 2 * x + nt, y) if kind == 1 else (3, 2 * y + nt, x)
            where, what = loc[key]
            if where == "reg":
                k, lo = sub(what)
            else:
                k, lo = "v", TMPF + 8 * nt
                wb.append((what, lo))
            for hb in range(2):
                for mp in range(2):
                    a(f"ds_read_b64_tr_b16 {rng(k, lo + 4*hb + 2*mp, 2)}, v{RA[2*mp+nt]} offset:{8192*hb}")
        a("s_waitcnt lgkmcnt(0)")
        for (m, lo) in wb:
            a(f"ds_write_b128 v{vWl}, v[{lo}:{lo+3}] offset:{2048*m}")
            a(f"ds_write_b128 v{vWl}, v[{lo+4}:{lo+7}] offset:{2048*m+1024}")
        a("s_barrier")
    stamp(11)
    rt(a, 1)
    a(f"""
    v_mov_b32 v24, -1
    v_mov_b32 v25, -1
    v_mov_b32 v26, -1
    v_mov_b32 v27, -1
    v_lshl_add_u32 v29, s{S_W}, 6, v{vLane}
    v_lshlrev_b32 v28, 4, v29
    s_mul_i32 s{S_T1}, s{S_H}, 18432
    s_add_u32 s{S_T1}, s{S_T1}, {PART}
    """)
    for u in range(4):
        a(f"buffer_store_dwordx4 v[24:27], v28, {WSR}, s{S_T1} offen")
        a(f"s_add_u32 s{S_T1}, s{S_T1}, 4096")
    a(f"""
    v_cmp_gt_u32 vcc, 128, v29
    s_mov_b64 exec, vcc
    buffer_store_dwordx4 v[24:27], v28, {WSR}, s{S_T1} offen
    v_cmp_gt_u32 vcc, 54, v29
    s_mov_b64 exec, vcc
    s_mul_i32 s{S_T1}, s{S_H}, 864
    s_add_u32 s{S_T1}, s{S_T1}, {MEM+9216}
    buffer_store_dwordx4 v[24:27], v28, {WSR}, s{S_T1} offen
    s_mov_b64 exec, -1
    """)
    if dbg_time:
        a(f"""
        s_lshl_b32 s{S_T1}, s{S_H}, 14
        s_add_u32 s{S_T1}, s{S_T1}, 0x7000000
        """)
        for u in range(4):
            a(f"buffer_store_dwordx4 v[24:27], v28, {WSR}, s{S_T1} offen")
            a(f"s_add_u32 s{S_T1}, s{S_T1}, 4096")
    if not MEMAHEAD:
        a(f"""
        s_mul_i32 s{S_T1}, s{S_H}, 18720
        s_add_u32 s{S_T1}, s{S_T1}, {MEM}
        """)
        for u in range(4):
            a(f"buffer_store_dwordx4 v[24:27], v28, {WSR}, s{S_T1} offen")
            a(f"s_add_u32 s{S_T1}, s{S_T1}, 4096")
        a(f"""
        v_cmp_gt_u32 vcc, 146, v29
        s_mov_b64 exec, vcc
        buffer_store_dwordx4 v[24:27], v28, {WSR}, s{S_T1} offen
        s_mov_b64 exec, -1
        """)
    a(f"""
    v_and_b32 v12, 7, {L}
    v_mul_u32_u24 v12, 1152, v12       ; t*1152
    v_lshrrev_b32 v13, 3, {L}          ; q
    s_lshl_b32 s{S_T1}, s{S_W}, 4
    v_add_u32 v15, s{S_T1}, v13
    v_add_u32 v16, 8, v15
    v_add_u32 v17, 64, v13
    s_lshl_b32 s{S_T2}, s{S_W}, 11
    v_lshlrev_b32 v14, 4, {L}
    v_add_u32 v14, {L_SH}, v14
    v_add_u32 v13, s{S_T2}, v14
    s_load_dwordx2 s[{S_A}:{S_A+1}], s[0:1], 80
    """)
    for r in (15, 16, 17):
        a(f"""
        v_mul_u32_u24 v18, 43, v{r}
        v_lshrrev_b32 v18, 9, v18          ; sigma/12
        v_mul_u32_u24 v18, 6, v18
        v_add_u32 v18, v18, v{r}           ; J early
        v_subrev_u32 v19, 48, v{r}
        v_mul_u32_u24 v20, 43, v19
        v_lshrrev_b32 v20, 8, v20          ; sp/6
        v_mul_u32_u24 v20, 12, v20
        v_add3_u32 v19, v19, v20, 12       ; J late
        v_cmp_gt_u32 vcc, 48, v{r}
        v_cndmask_b32 v18, v19, v18, vcc
        v_lshl_add_u32 v{r}, v18, 4, v12
        """)
    a(f"""
    s_waitcnt lgkmcnt(0)
    s_and_b32 s{S_A+1}, s{S_A+1}, 0xffff
    s_mov_b32 s{S_A+2}, 9216
    s_mov_b32 s{S_A+3}, 0x00020000
    buffer_load_dwordx4 v[28:31], v15, s[{S_A}:{S_A+3}], 0 offen
    buffer_load_dwordx4 v[20:23], v16, s[{S_A}:{S_A+3}], 0 offen
    buffer_load_dwordx4 v[24:27], v17, s[{S_A}:{S_A+3}], 0 offen
    s_waitcnt vmcnt(0)
    ds_write_b128 v13, v[28:31]
    ds_write_b128 v13, v[20:23] offset:1024
    ds_write_b128 v14, v[24:27] offset:8192
    """)
    vm.q = []
    a(f"""
    s_waitcnt lgkmcnt(0)
    s_barrier
    s_cmp_lg_u32 s{S_W}, 0
    s_cbranch_scc1 TEAM_BAR_DONE
    v_mov_b32 v12, 1
    v_mov_b32 v13, {D_TEAMBAR*4}
    s_mov_b64 exec, 1
    buffer_atomic_add v12, v13, s[{S_DBG}:{S_DBG+3}], 0 offen
    """)
    a.label("TEAM_BAR_POLL")
    a(f"""
    buffer_load_dword v14, v13, s[{S_DBG}:{S_DBG+3}], 0 offen sc1
    s_waitcnt vmcnt(0)
    v_readfirstlane_b32 s{S_T1}, v14
    s_cmp_lt_u32 s{S_T1}, 32
    s_cbranch_scc1 TEAM_BAR_POLL
    """)
    a(f"v_mov_b32 v13, {FLG+F_KV}")
    a.label("TEAM_KV0_POLL")
    a(f"""
    buffer_load_dword v14, v13, {WSR}, 0 offen sc1
    s_waitcnt vmcnt(0)
    v_readfirstlane_b32 s{S_T1}, v14
    s_lshr_b32 s{S_T1}, s{S_T1}, s{S_H}
    s_bitcmp1_b32 s{S_T1}, 0
    s_cbranch_scc0 TEAM_KV0_POLL
    s_mov_b64 exec, -1
    """)
    a.label("TEAM_BAR_DONE")
    a("s_barrier")
    rt(a, 2)
    a(f"""
    s_mov_b32 s{S_STEP}, 0
    s_lshl_b32 s{S_T1}, s{S_H}, 19
    s_add_u32 s{S_KXO}, s{S_T1}, {KX}
    s_add_u32 s{S_KXO2}, s{S_KXO}, 4096
    s_add_u32 s{S_VXO}, s{S_T1}, {VX}
    s_lshl_b32 s{S_T1}, s{S_H}, 18
    s_add_u32 s{S_KMO}, s{S_T1}, {KM}
    s_lshl_b32 s{S_T1}, s{S_H}, 17
    s_add_u32 s{S_VMO}, s{S_T1}, {VM}
    s_lshl_b32 s{S_T1}, s{S_H}, 7
    s_add_u32 s{S_PWO}, s{S_T1}, {PART}
    s_add_u32 s{S_PW1}, s{S_PWO}, 16384
    s_add_u32 s{S_PW2}, s{S_PWO}, 32768
    s_add_u32 s{S_PW3}, s{S_PWO}, 49152
    s_mul_i32 s{S_T1}, s{S_W}, {18*4096}
    s_add_u32 s{S_PW4}, s{S_PWO}, 65536
    s_add_u32 s{S_PW4}, s{S_PW4}, s{S_T1}
    s_mov_b32 s96, 0
    s_mov_b32 s97, 0
    s_lshl_b32 s{S_JOB}, s{S_W}, 5
    s_add_u32 s{S_JOB}, s{S_JOB}, s{S_H}
    s_mul_i32 s{S_T1}, s{S_JOB}, 43
    s_lshr_b32 s{S_T1}, s{S_T1}, 9
    s_mul_i32 s{S_T1}, s{S_T1}, 6
    s_add_u32 s{S_T1}, s{S_T1}, s{S_JOB}
    s_sub_u32 s{S_T2}, s{S_JOB}, 48
    s_mul_i32 s{S_T3}, s{S_T2}, 43
    s_lshr_b32 s{S_T3}, s{S_T3}, 8
    s_mul_i32 s{S_T3}, s{S_T3}, 12
    s_add_u32 s{S_T2}, s{S_T2}, s{S_T3}
    s_add_u32 s{S_T2}, s{S_T2}, 12
    s_cmp_lt_u32 s{S_JOB}, 48
    s_cselect_b32 s{S_T1}, s{S_T1}, s{S_T2}
    s_and_b32 s{S_T1}, s{S_T1}, 127
    s_lshl_b32 s{S_T1}, s{S_T1}, 12
    s_add_u32 s{S_RDO}, s{S_T1}, {PART}
    s_lshl_b32 s{S_T1}, s{S_JOB}, 7
    s_add_u32 s{S_MWB}, s{S_T1}, {MEM}
    s_lshl_b32 s{S_EOF}, s{S_W}, 11
    s_lshl_b32 s{S_T1}, s{S_H}, 4
    s_lshl_b32 s{S_T2}, s{S_W}, 2
    s_add_u32 s{S_FKM}, s{S_T1}, s{S_T2}
    s_add_u32 s{S_FKM}, s{S_FKM}, {FLG+F_KM}
    """)
    def vx_addr(dst):
        a(f"""
        v_bfe_u32 v{dst}, v{vWl}, 4, 4
        v_lshl_add_u32 v{dst}, s{S_W}, 5, v{dst}
        v_lshlrev_b32 v{dst}, 6, v{dst}
        v_bfe_u32 v{dst+1}, v{vWl}, 8, 2
        v_lshl_add_u32 v{dst}, v{dst+1}, 4, v{dst}
        """)
    def kx_load():
        a(f"buffer_load_dwordx4 v[{KXR}:{KXR+3}], v{vKX}, {WSR}, s{S_KXO} offen")
        a(f"buffer_load_dwordx4 v[{KXR+4}:{KXR+7}], v{vKX}, {WSR}, s{S_KXO2} offen")
    def vx_load(ad):
        a(f"buffer_load_dwordx4 v[{VXR}:{VXR+3}], v{ad}, {WSR}, s{S_VXO} offen")
        a(f"buffer_load_dwordx4 v[{VXR+4}:{VXR+7}], v{ad}, {WSR}, s{S_VXO} offen offset:1024")
    def zero4(r):
        a(f"ds_read_b128 v[{r}:{r+3}], v{vIDX} offset:0" if False else f"ds_read_b128 v[{r}:{r+3}], v{vZero}")
        lg.issue("zero")
    kx_load(); vx_addr(12); vx_load(12)
    for r in range(24): a(f"v_mov_b32 v{ACC[0]+r}, 0")
    a("s_waitcnt vmcnt(0)")

    def w_read(m):
        b = WB[m % 2]
        a(f"ds_read_b128 v[{b}:{b+3}], v{vWl} offset:{2048*m}"); lg.issue(("w", m))
        a(f"ds_read_b128 v[{b+4}:{b+7}], v{vWl} offset:{2048*m+1024}"); lg.issue(("w", m))
    def abslot(kk): return AB[kk % 3]
    def a_read(kk):
        b = abslot(kk)
        a(f"ds_read_b128 v[{b}:{b+3}], v{vSh} offset:{1024*kk}"); lg.issue(("a", kk))
    def smf(T, kk):
        where, what = loc[(1, T, kk)]
        ab = abslot(kk)
        need = [t for t in (("a", kk), ("w", what) if where == "lds" else None) if t and lg.has(t)]
        if need:
            last = max(need, key=lambda t: max(i for i, x in enumerate(lg.q) if x == t))
            lg.wait(last)
        b = vr(WB[what % 2], 8) if where == "lds" else what
        a(f"v_smfmac_f32_16x16x64_bf16 v[{ACC[T]}:{ACC[T]+3}], v[{ab}:{ab+3}], {b}, v{vIDX} abid:1")
        if where == "lds" and what + 2 < 18:
            w_read(what + 2)
    LD, LA = 20, vLane
    w_read(0); w_read(1)
    a("s_waitcnt lgkmcnt(0)")
    a(f"""
    s_mov_b32 s{S_FIRST}, 0x7ff00000
    s_mov_b32 s{S_RDP}, 0x7ff00000
    v_mov_b32 v{LA}, 0x7ff00000
    s_cmp_lt_u32 s{S_W}, 2
    s_cselect_b32 s{S_TCH}, s{S_KXO}, s{S_VXO}
    s_and_b32 s{S_T2}, s{S_W}, 1
    s_lshl_b32 s{S_T2}, s{S_T2}, 12
    s_add_u32 s{S_TCH}, s{S_TCH}, s{S_T2}
    s_add_u32 s{S_TCH}, s{S_TCH}, 8192
    """)
    a.label("TEAM_STEP")
    lg.q = []
    stamp(0)
    a_read(0); a_read(1); a_read(2)
    for n, (T, kk) in enumerate(order[:48]):
        smf(T, kk)
        if kk < 6 and T == 5: a_read(kk + 3)
    stamp(1)
    q0, q1, k0, k1 = ACC[0:4]
    Z = q1
    vt = order[48:]
    smf(*vt[0]); smf(*vt[1])
    for (qq, kq, off) in ((q0, k0, 0), (q1, k1, 128)):
        a(f"""
        v_add_f32 v{qq}, v{qq}, v{qq+1}
        v_add_f32 v{qq+2}, v{qq+2}, v{qq+3}
        v_add_f32 v{kq}, v{kq}, v{kq+1}
        v_add_f32 v{kq+2}, v{kq+2}, v{kq+3}
        v_cvt_pk_bf16_f32 v{qq}, v{qq}, v{qq+2}
        v_cvt_pk_bf16_f32 v{kq}, v{kq}, v{kq+2}
        ds_write2_b32 v{vZw}, v{kq}, v{qq} offset0:{off} offset1:{off+4}
        """); lg.issue("zw")
    a(f"ds_read_b64_tr_b16 v[{Z}:{Z+1}], v{vZr}"); lg.issue("z")
    a(f"ds_read_b64_tr_b16 v[{Z+2}:{Z+3}], v{vZr} offset:128"); lg.issue("z")
    for x in vt[2:]: smf(*x)
    v0_, v1_ = ACC[4], ACC[5]
    VMB = 48
    T0, T1, T2 = q0, k0, k1
    a(f"""
    v_bfe_u32 v61, v{vWl}, 4, 4
    v_lshl_add_u32 v61, s{S_W}, 5, v61
    v_bfe_u32 v60, v{vWl}, 8, 2
    v_lshlrev_b32 v61, 4, v61
    v_lshl_add_u32 v61, v60, 2, v61
    v_mov_b32 v{VMB+1}, 0
    v_mov_b32 v{VMB+3}, 0
    """)
    lg.wait("z")
    a(f"""
    {'s_waitcnt vmcnt(2)' if JIT else ''}
    v_mfma_f32_16x16x32_bf16 v[{T1}:{T1+3}], v[{KXR}:{KXR+3}], v[{Z}:{Z+3}], 0
    v_mfma_f32_16x16x32_bf16 v[{T2}:{T2+3}], v[{KXR+4}:{KXR+7}], v[{Z}:{Z+3}], 0
    v_mfma_f32_16x16x32_bf16 v[{T0}:{T0+3}], v[{Z}:{Z+3}], v[{Z}:{Z+3}], 0
    v_add_f32 v{v0_}, v{v0_}, v{v0_+1}
    v_add_f32 v{v0_+2}, v{v0_+2}, v{v0_+3}
    v_add_f32 v{v1_}, v{v1_}, v{v1_+1}
    v_add_f32 v{v1_+2}, v{v1_+2}, v{v1_+3}
    v_cvt_pk_bf16_f32 v{VMB}, v{v0_}, v{v0_+2}
    v_cvt_pk_bf16_f32 v{VMB+2}, v{v1_}, v{v1_+2}
    ds_write_b128 v{vSw}, v[{T1}:{T1+3}] offset:768
    ds_write_b128 v{vSw}, v[{T2}:{T2+3}] offset:1280
    ds_write_b128 v{vSw}, v[{T0}:{T0+3}]
    buffer_store_dwordx4 v[{Z}:{Z+3}], v{vKX}, {WSR}, s{S_KMO} offen sc1
    buffer_store_dword v{VMB}, v61, {WSR}, s{S_VMO} offen sc1
    buffer_store_dword v{VMB+2}, v61, {WSR}, s{S_VMO} offen offset:256 sc1
    """)
    stamp(2)
    lg.wait_all()
    a("s_barrier")
    stamp(3)
    X = 12; TZ = 28
    for w2 in range(4):
        a(f"ds_read_b128 v[{X+4*w2}:{X+4*w2+3}], v{vSrX} offset:{L_REG*w2}"); lg.issue(("x", w2))
        a(f"ds_read_b64 v[{TZ+2*w2}:{TZ+2*w2+1}], v{vSr0} offset:{L_REG*w2}"); lg.issue(("x", w2))
    A3 = [36, 40, 44, 12, 16, 20, 24, 48, 52]
    for U in range(3): zero4(A3[U])
    if not JIT:
        a(f"s_add_u32 s{S_T1}, s{S_KXO}, 8192")
        a(f"s_add_u32 s{S_T2}, s{S_KXO2}, 8192")
        a(f"s_add_u32 s{S_T3}, s{S_VXO}, 8192")
        a(f"buffer_load_dwordx4 v[{KXR}:{KXR+3}], v{vKX}, {WSR}, s{S_T1} offen")
        a(f"buffer_load_dwordx4 v[{KXR+4}:{KXR+7}], v{vKX}, {WSR}, s{S_T2} offen")
        a(f"v_lshlrev_b32 v60, 2, v61")
    lg.wait(("x", 1))
    a(f"""
    v_pk_add_f32 v[{X}:{X+1}], v[{X}:{X+1}], v[{X+4}:{X+5}]
    v_pk_add_f32 v[{X+2}:{X+3}], v[{X+2}:{X+3}], v[{X+6}:{X+7}]
    v_pk_add_f32 v[{TZ}:{TZ+1}], v[{TZ}:{TZ+1}], v[{TZ+2}:{TZ+3}]
    """)
    lg.wait(("x", 3))
    a(f"""
    v_pk_add_f32 v[{X+8}:{X+9}], v[{X+8}:{X+9}], v[{X+12}:{X+13}]
    v_pk_add_f32 v[{X+10}:{X+11}], v[{X+10}:{X+11}], v[{X+14}:{X+15}]
    v_pk_add_f32 v[{TZ+4}:{TZ+5}], v[{TZ+4}:{TZ+5}], v[{TZ+6}:{TZ+7}]
    v_pk_add_f32 v[{X}:{X+1}], v[{X}:{X+1}], v[{X+8}:{X+9}]
    v_pk_add_f32 v[{X+2}:{X+3}], v[{X+2}:{X+3}], v[{X+10}:{X+11}]
    v_pk_add_f32 v[{X+4}:{X+5}], v[{TZ}:{TZ+1}], v[{TZ+4}:{TZ+5}]
    """)
    Mx = X + 6; Tm = X + 7
    PX = 28; PM = 32
    O = 52
    a(f"""
    v_max3_f32 v{Mx}, v{X}, v{X+1}, v{X+2}
    v_max3_f32 v{Tm}, v{X+3}, v{X+4}, v{X+5}
    v_max_f32 v{Mx}, v{Mx}, v{Tm}
    """)
    zero4(20); zero4(24)
    a(f"""
    v_max_f32_dpp v{Mx}, v{Mx}, v{Mx} row_ror:8 row_mask:0xf bank_mask:0xf
    v_mov_b32 v{Tm}, v{Mx}
    v_mov_b32 v{PM+1}, 0
    s_cmp_eq_u32 s{S_STEP}, 63
    v_permlane16_swap_b32 v{Tm}, v{Mx}
    v_max_f32 v{Mx}, v{Mx}, v{Tm}
    v_mov_b32 v{Tm}, v{Mx}
    s_nop 1
    v_permlane32_swap_b32 v{Tm}, v{Mx}
    v_max_f32 v{Mx}, v{Mx}, v{Tm}
    v_mul_f32 v{Mx}, s{S_CEXP}, v{Mx}
    """)
    for r in (4, 5, 0, 1, 2, 3): a(f"v_fma_f32 v{X+r}, v{X+r}, s{S_CEXP}, -v{Mx}")
    for r in (4, 5, 0, 1, 2, 3): a(f"v_exp_f32 v{X+r}, v{X+r}")
    a(f"""
    v_cvt_pk_bf16_f32 v{PM}, v{X+4}, v{X+5}
    v_cvt_pk_bf16_f32 v{PX}, v{X}, v{X+1}
    v_cvt_pk_bf16_f32 v{PX+1}, v{X+2}, v{X+3}
    v_add_f32 v{Mx}, v{X+4}, v{X+5}
    v_mfma_f32_16x16x16_bf16 v[{O}:{O+3}], v[{VMB}:{VMB+1}], v[{PM}:{PM+1}], 0
    v_mov_b32_dpp v{PX+2}, v{PX} row_ror:8 row_mask:0xf bank_mask:0xf
    v_mov_b32_dpp v{PX+3}, v{PX+1} row_ror:8 row_mask:0xf bank_mask:0xf
    v_mfma_f32_16x16x16_bf16 v[{O+4}:{O+7}], v[{VMB+2}:{VMB+3}], v[{PM}:{PM+1}], 0
    v_add_f32 v{Tm}, v{X}, v{X+1}
    v_fma_f32 v{Mx}, v{Mx}, 0.5, v{Tm}
    v_add_f32 v{Tm}, v{X+2}, v{X+3}
    v_add_f32 v{Mx}, v{Mx}, v{Tm}
    v_mfma_f32_16x16x32_bf16 v[{O}:{O+3}], v[{VXR}:{VXR+3}], v[{PX}:{PX+3}], v[{O}:{O+3}]
    v_mfma_f32_16x16x32_bf16 v[{O+4}:{O+7}], v[{VXR+4}:{VXR+7}], v[{PX}:{PX+3}], v[{O+4}:{O+7}]
    v_add_f32_dpp v{Mx}, v{Mx}, v{Mx} row_ror:8 row_mask:0xf bank_mask:0xf
    v_mov_b32 v{Tm}, v{Mx}
    """)
    zero4(12); zero4(48)
    a(f"""
    v_permlane16_swap_b32 v{Tm}, v{Mx}
    v_add_f32 v{Mx}, v{Mx}, v{Tm}
    v_mov_b32 v{Tm}, v{Mx}
    {"s_nop 1" if JIT else f"buffer_load_dwordx4 v[{VXR}:{VXR+3}], v60, {WSR}, s{S_T3} offen"}
    {"" if JIT else f"buffer_load_dwordx4 v[{VXR+4}:{VXR+7}], v60, {WSR}, s{S_T3} offen offset:1024"}
    v_permlane32_swap_b32 v{Tm}, v{Mx}
    v_add_f32 v{Mx}, v{Mx}, v{Tm}
    v_rcp_f32 v{Mx}, v{Mx}
    s_nop 0
    v_mov_b32 v{Tm}, v{Mx}
    """)
    for p in range(4): a(f"v_pk_mul_f32 v[{O+2*p}:{O+2*p+1}], v[{O+2*p}:{O+2*p+1}], v[{Mx}:{Tm}]")
    OP = 60
    for p in range(4): a(f"v_cvt_pk_bf16_f32 v{OP+p}, v{O+2*p}, v{O+2*p+1}")
    a(f"ds_write_b128 v{vSw}, v[{OP}:{OP+3}] offset:256")
    zero4(16); zero4(52)
    stamp(4)
    a("s_waitcnt lgkmcnt(0)")
    a("s_barrier")
    stamp(5)
    AO = 56
    a(f"ds_read_b128 v[{AO}:{AO+3}], v{vOr}")
    a(f"ds_read_b128 v[{AO+4}:{AO+7}], v{vOr} offset:{2*L_REG}")
    a("s_cbranch_scc1 TEAM_LAST")
    RL = 35
    a(f"""
    v_bfe_u32 v28, v{vWl}, 7, 1
    v_lshlrev_b32 v28, 12, v28
    v_bfe_u32 v29, v{vWl}, 6, 1
    v_lshl_add_u32 v28, v29, 6, v28
    v_bfe_u32 v29, v{vWl}, 8, 2
    v_lshl_add_u32 v28, v29, 4, v28
    v_bfe_u32 v29, v{vWl}, 5, 1
    v_lshl_add_u32 v28, v29, 3, v28
    v_bfe_u32 v29, v{vWl}, 4, 1
    v_lshl_add_u32 v28, v29, 30, v28
    v_and_b32 v{RL}, 0x70, v{vWl}
    v_bfe_u32 v29, v{vWl}, 7, 3
    v_lshl_add_u32 v{RL}, v29, 9, v{RL}
    """)
    a("s_waitcnt lgkmcnt(0)" if dbg_time else "s_waitcnt lgkmcnt(1)")
    PWS = [S_PWO, S_PW1, S_PW2, S_PW3]
    def pair_out(pp):
        Ua, Ub = A3[2 * pp], A3[2 * pp + 1]
        return [f"v_add_f32 v{Ua}, v{Ua}, v{Ua+1}",
             f"v_add_f32 v{Ua+2}, v{Ua+2}, v{Ua+3}",
             f"v_add_f32 v{Ub}, v{Ub}, v{Ub+1}",
             f"v_add_f32 v{Ub+2}, v{Ub+2}, v{Ub+3}",
             f"v_cvt_pk_bf16_f32 v{Ua}, v{Ua}, v{Ub}",
             f"v_cvt_pk_bf16_f32 v{Ua+1}, v{Ua+2}, v{Ub+2}",
             f"buffer_store_dwordx2 v[{Ua}:{Ua+1}], v{vPW}, {WSR}, s{PWS[pp]} offen"]
    U8 = A3[8]
    t8 = [f"v_add_f32 v{U8}, v{U8}, v{U8+1}",
          f"v_add_f32 v{U8+1}, v{U8+2}, v{U8+3}",
          f"s_add_u32 s{S_STEP}, s{S_STEP}, 1",
          f"v_mov_b32_dpp v{U8+2}, v{U8} quad_perm:[1,0,3,2] row_mask:0xf bank_mask:0xf",
          f"v_mov_b32_dpp v{U8+3}, v{U8+1} quad_perm:[1,0,3,2] row_mask:0xf bank_mask:0xf",
          f"v_cvt_pk_bf16_f32 v{U8}, v{U8}, v{U8+2}",
          f"v_cvt_pk_bf16_f32 v{U8+1}, v{U8+1}, v{U8+3}",
          f"buffer_store_dwordx2 v[{U8}:{U8+1}], v28, {WSR}, s{S_PW4} offen"]
    pend = []
    first = True
    seq = [0, 1, 2, 3, 4, 5, 8, 6, 7]
    for n, U in enumerate(seq):
        a(f"v_smfmac_f32_16x16x64_bf16 v[{A3[U]}:{A3[U]+3}], v[{AO}:{AO+3}], {loc[(3,U,0)][1]}, v{vIDX} abid:1")
        if first: a("s_waitcnt lgkmcnt(0)"); first = False
        for _ in range(2):
            if pend: a(pend.pop(0))
        a(f"v_smfmac_f32_16x16x64_bf16 v[{A3[U]}:{A3[U]+3}], v[{AO+4}:{AO+7}], {loc[(3,U,1)][1]}, v{vIDX} abid:1")
        for _ in range(2):
            if pend: a(pend.pop(0))
        if n == 2: pend += pair_out(0)
        if n == 4: pend += pair_out(1)
        if n == 6: pend += pair_out(2)
    for x in pend: a(x)
    for x in t8: a(x)
    for x in pair_out(3): a(x)
    stamp(6)
    SEL = 28; D = 40; SA = 12; RO = 46
    P0, P2, P1, P3 = 38, 39, 33, 34
    def w1_loads(b, masked=False):
        if dbg_time: a("s_add_u32 s96, s96, 1")
        for hh in range(4):
            if masked: a(f"s_mov_b64 exec, s[{84+2*hh}:{85+2*hh}]")
            a(f"buffer_load_dwordx4 v[{b+4*hh}:{b+3+4*hh}], v{RL}, {WSR}, s{S_RDO} offen offset:{128*hh} sc1")
        if masked: a("s_mov_b64 exec, -1")
    book = f"""
    s_add_u32 s{S_KMO}, s{S_KMO}, 4096
    s_add_u32 s{S_VMO}, s{S_VMO}, 2048
    s_add_u32 s{S_KXO}, s{S_KXO}, 8192
    s_add_u32 s{S_KXO2}, s{S_KXO2}, 8192
    s_add_u32 s{S_VXO}, s{S_VXO}, 8192
    s_mov_b32 s{S_T2}, {PART_SLOT}
    s_sub_u32 s{S_T3}, 0, s{S_T2}
    s_bitcmp1_b32 s{S_STEP}, 0
    s_cselect_b32 s{S_T0}, s{S_T2}, s{S_T3}
    s_add_u32 s{S_PWO}, s{S_PWO}, s{S_T0}
    s_add_u32 s{S_PW1}, s{S_PW1}, s{S_T0}
    s_add_u32 s{S_PW2}, s{S_PW2}, s{S_T0}
    s_add_u32 s{S_PW3}, s{S_PW3}, s{S_T0}
    s_add_u32 s{S_PW4}, s{S_PW4}, s{S_T0}
    v_and_b32 v{P0}, 0x3f0, v{vWl}
    s_add_u32 s{S_T3}, s{S_EOF}, {L_SH}
    v_add_u32 v{P2}, s{S_T3}, v{P0}
    s_add_u32 s{S_TCH}, s{S_TCH}, 8192
    s_and_b32 s{S_T2}, s{S_STEP}, {3 if RING else 127}
    s_mul_i32 s{S_T2}, s{S_T2}, 9216
    s_add_u32 s{S_MEMW}, s{S_MWB}, s{S_T2}
    s_add_u32 s{S_MEMR3}, s{S_T2}, {MEM+8192}
    s_add_u32 s{S_MEMR}, s{S_T2}, s{S_EOF}
    s_add_u32 s{S_MEMR}, s{S_MEMR}, {MEM}
    s_add_u32 s{S_T2}, s{S_STEP}, 3
    s_and_b32 s{S_T2}, s{S_T2}, 3
    s_mul_i32 s{S_T2}, s{S_T2}, 9216
    s_add_u32 s{S_FIRST}, s{S_MWB}, s{S_T2}
    v_and_b32 v{P1}, 0xf0, v{P0}
    s_lshl_b32 s{S_T3}, s{S_W}, 8
    s_add_u32 s{S_MEMR3}, s{S_MEMR3}, s{S_T3}
    s_add_u32 s{S_T3}, s{S_T3}, {L_SH+8192}
    v_add_u32 v{P3}, s{S_T3}, v{P1}
    """
    selcalc = f"""
    v_and_b32 v{RO}, 16, v{vWl}
    v_mov_b32 v36, 0x3f80
    v_lshlrev_b32 v{RO}, v{RO}, v36
    v_bfe_u32 v36, v{vWl}, 5, 3
    v_cmp_eq_u32 vcc, 0, v36
    v_cmp_eq_u32 s[98:99], 1, v36
    v_cmp_eq_u32 s[100:101], 2, v36
    v_cndmask_b32 v{SEL}, 0, v{RO}, vcc
    v_cmp_eq_u32 vcc, 3, v36
    v_cndmask_b32 v{SEL+1}, 0, v{RO}, s[98:99]
    v_cndmask_b32 v{SEL+2}, 0, v{RO}, s[100:101]
    v_cndmask_b32 v{SEL+3}, 0, v{RO}, vcc
    v_bfe_u32 v{RO}, v{vWl}, 6, 1
    v_lshlrev_b32 v{RO}, 3, v{RO}
    v_bfe_u32 v36, v{vWl}, 8, 1
    v_lshl_add_u32 v{RO}, v36, 2, v{RO}
    v_bfe_u32 v36, v{vWl}, 4, 2
    v_lshl_add_u32 v{RO}, v36, 5, v{RO}
    v_and_b32 v36, 0x280, v{vWl}
    v_lshl_add_u32 v{RO}, v36, 21, v{RO}
    """
    a(book)
    a(f"s_cmp_ge_u32 s{S_JOB}, 72")
    a("s_cbranch_scc1 TEAM_NOJOB")
    a(selcalc)
    if W1_PRE: a(f"s_sleep {W1_PRE}")
    w1_loads(SA)
    a.label("TEAM_W1")
    for hh in range(4):
        a(f"s_waitcnt vmcnt({3 - hh})")
        a(f"v_mfma_f32_16x16x32_bf16 v[{D}:{D+3}], v[{SEL}:{SEL+3}], v[{SA+4*hh}:{SA+3+4*hh}], {'0' if hh == 0 else vr(D,4)}")
    for hh in range(4):
        b = SA + 4 * hh
        a(f"v_max3_u32 v{48+hh}, v{b}, v{b+1}, v{b+2}")
        a(f"v_max_u32 v{48+hh}, v{48+hh}, v{b+3}")
    for hh in range(4):
        a(f"v_cmp_eq_u32 s[{84+2*hh}:{85+2*hh}], -1, v{48+hh}")
    for r in range(4):
        a(f"v_add_f32_dpp v{D+r}, v{D+r}, v{D+r} row_ror:8 row_mask:0xf bank_mask:0xf")
    a(f"""
    s_or_b64 s[92:93], s[84:85], s[86:87]
    s_or_b64 s[94:95], s[88:89], s[90:91]
    v_cvt_pk_bf16_f32 v{D+4}, v{D}, v{D+1}
    v_cvt_pk_bf16_f32 v{D+5}, v{D+2}, v{D+3}
    s_or_b64 s[92:93], s[92:93], s[94:95]
    s_cbranch_scc0 TEAM_W1_OK
    """)
    w1_loads(SA, True)
    a("s_waitcnt vmcnt(0)")
    a("s_branch TEAM_W1")
    a.label("TEAM_W1_OK")
    stamp(7)
    a(f"""
    buffer_store_dword v{D+4}, v{RO}, {WSR}, s{S_MEMW} offen
    buffer_store_dword v{D+5}, v{RO}, {WSR}, s{S_MEMW} offen offset:16
    s_mov_b32 s{S_RDP}, s{S_RDO}
    s_branch TEAM_W2PRE
    """)
    a.label("TEAM_NOJOB")
    a(f"""
    s_cmp_lg_u32 s{S_W}, 3
    s_cbranch_scc1 TEAM_W2PRE
    s_add_u32 s{S_T1}, s{S_STEP}, 1
    s_and_b32 s{S_T2}, s{S_T1}, 3
    s_cmp_lg_u32 s{S_T2}, 0
    s_cbranch_scc1 TEAM_W2PRE
    s_cmp_ge_u32 s{S_T1}, 64
    s_cbranch_scc1 TEAM_W2PRE
    s_lshl_b32 s{S_T1}, s{S_T1}, 4
    v_mov_b32 v12, {FLG+F_KV}
    """)
    a.label("TEAM_KVP")
    a(f"""
    buffer_load_dword v13, v12, {WSR}, s{S_T1} offen sc1
    s_waitcnt vmcnt(0)
    v_readfirstlane_b32 s{S_T2}, v13
    s_lshr_b32 s{S_T2}, s{S_T2}, s{S_H}
    s_bitcmp1_b32 s{S_T2}, 0
    s_cbranch_scc0 TEAM_KVP
    """)
    a.label("TEAM_W2PRE")
    def w2_loads(b, masked=False):
        if dbg_time: a("s_add_u32 s97, s97, 1")
        for k, (ad, so, off) in enumerate(((P0, S_MEMR, ""), (P0, S_MEMR, " offset:1024"), (P1, S_MEMR3, ""))):
            if masked: a(f"s_mov_b64 exec, s[{84+2*k}:{85+2*k}]")
            a(f"buffer_load_dwordx4 v[{b+4*k}:{b+4*k+3}], v{ad}, {WSR}, s{so} offen{off} sc1")
        if masked: a("s_mov_b64 exec, -1")
    lg.q = []
    for r in (0, 1): zero4(ACC[r])
    w_read(0); w_read(1)
    a(f"""
    s_add_u32 s{S_RDO}, s{S_RDO}, s{S_T0}
    v_mov_b32 v40, -1
    v_mov_b32 v41, -1
    v_mov_b32 v42, -1
    v_mov_b32 v43, -1
    v_mov_b32 v44, s{S_STEP}
    v_mov_b32 v45, s{S_FKM}
    """)
    vx_addr(46)
    a(f"v_lshlrev_b32 v47, 2, v{P0}")
    if W2_PRE: a(f"s_sleep {W2_PRE}")
    w2_loads(SA)
    a.label("TEAM_W2")
    for k in range(3):
        b = SA + 4 * k
        a(f"s_waitcnt vmcnt({2-k})")
        a(f"ds_write_b128 v{P2 if k < 2 else P3}, v[{b}:{b+3}]{' offset:1024' if k == 1 else ''}")
        a(f"v_max3_u32 v36, v{b}, v{b+1}, v{b+2}")
        a(f"v_max_u32 v36, v36, v{b+3}")
        a(f"v_cmp_eq_u32 s[{84+2*k}:{85+2*k}], -1, v36")
    a(f"""
    s_or_b64 s[92:93], s[84:85], s[86:87]
    s_or_b64 s[92:93], s[92:93], s[88:89]
    s_cbranch_scc0 TEAM_W2_OK
    s_and_b64 s[94:95], s[84:85], s[86:87]
    s_cmp_eq_u64 s[94:95], -1
    s_cbranch_scc0 TEAM_W2_RE
    s_sleep {max(W2_GAP,1)}
    """)
    a.label("TEAM_W2_RE")
    w2_loads(SA, True)
    a("s_waitcnt vmcnt(0)")
    a("s_branch TEAM_W2")
    a.label("TEAM_W2_OK")
    stamp(9)
    if dbg_time:
        a(f"""
        s_waitcnt lgkmcnt(0)
        s_lshl_b32 s{S_T1}, s{S_STEP}, 7
        s_lshl_b32 s{S_T2}, s{S_H}, 2
        s_add_u32 s{S_T1}, s{S_T1}, s{S_T2}
        s_add_u32 s{S_T1}, s{S_T1}, s{S_W}
        s_lshl_b32 s{S_T1}, s{S_T1}, 6
        s_add_u32 s{S_T1}, s{S_T1}, 0x7000000
        """)
        for i in range(10):
            a(f"v_writelane_b32 v36, s{64+2*i}, {i}")
        a(f"v_writelane_b32 v36, s96, 12")
        a(f"v_writelane_b32 v36, s97, 13")
        a(f"v_bfe_u32 v37, v{vWl}, 2, 8")
        a(f"s_mov_b64 exec, 0xffff")
        a(f"buffer_store_dword v36, v37, {WSR}, s{S_T1} offen")
        a(f"s_mov_b64 exec, -1")
    rt(a, 16, S_STEP)
    if JIT: kx_load(); vx_load(46)
    a(f"""
    s_cmp_ge_u32 s{S_JOB}, 72
    s_waitcnt lgkmcnt(0)
    s_barrier
    s_cbranch_scc1 TEAM_NORESET
    buffer_store_dwordx4 v[40:43], v{RL}, {WSR}, s{S_RDP} offen
    buffer_store_dwordx4 v[40:43], v{RL}, {WSR}, s{S_RDP} offen offset:128
    buffer_store_dwordx4 v[40:43], v{RL}, {WSR}, s{S_RDP} offen offset:256
    buffer_store_dwordx4 v[40:43], v{RL}, {WSR}, s{S_RDP} offen offset:384
    """)
    if RING: a(f"""
    s_mov_b64 exec, 0xff
    buffer_store_dwordx4 v[40:43], v{RL}, {WSR}, s{S_FIRST} offen
    s_mov_b64 exec, -1
    """)
    a.label("TEAM_NORESET")
    a(f"""
    buffer_store_dword v44, v45, {WSR}, 0 offen sc1
    buffer_load_dword v{vLane}, v47, {WSR}, s{S_TCH} offen
    """)
    for r in (2, 3, 4, 5): zero4(ACC[r])
    a("s_branch TEAM_STEP")
    a.label("TEAM_LAST")
    rt(a, 3)
    a(f"""
    s_waitcnt vmcnt(0) lgkmcnt(0)
    v_mov_b32 v28, 64
    v_mov_b32 v29, s{S_FKM}
    buffer_store_dword v28, v29, {WSR}, 0 offen sc1
    s_endpgm
    """)
```
